```python
import torch

def _softmax(x, axis=-1):
    return torch.softmax(x, dim=axis)
def _gelu(x):
    return torch.nn.functional.gelu(x, approximate="tanh")
def _silu(x):
    return torch.nn.functional.silu(x)
def _sigmoid(x):
    return torch.sigmoid(x)
def _layernorm(x, axis=-1, eps=1e-5):
    m = x.mean(dim=axis, keepdim=True)
    v = x.var(dim=axis, keepdim=True, unbiased=False)
    return (x - m) / torch.sqrt(v + eps)
def _scatter_add(tgt, idx, src, axis=0):
    return tgt.clone().index_add_(axis, idx, src)
def _segment_sum(src, seg, n):
    out = torch.zeros((n,) + src.shape[1:], dtype=src.dtype)
    return out.index_add_(0, seg, src)
def _pad(x, pw):
    flat = tuple(v for pair in reversed(pw) for v in pair)
    return torch.nn.functional.pad(x, flat)

kernel_name = 'recurrent_scan__gqa_block_cached__glu_gated_reglu__decode'

def setup_inputs():

    _w = (lambda a: (lambda t: t.to(torch.bfloat16) if t.is_floating_point() else t)(torch.as_tensor(a)))
    def _A_setup():
        B, Sq, D = 2, 1, 576
        Hq, Hkv, Sk, Dh = 32, 16, 32768, 128
        assert Hq % Hkv == 0, (Hq, Hkv)
        return {
            "x": _w((lambda *s: torch.randn(*s, dtype=torch.bfloat16) * 0.4)(B, Sq, D)),
            "k_cache": _w((lambda *s: torch.randn(*s, dtype=torch.bfloat16) * 1.6)(B, Hkv, Sk, Dh)),
            "v_cache": _w((lambda *s: torch.randn(*s, dtype=torch.bfloat16) * 1.6)(B, Hkv, Sk, Dh)),
            "wq": _w((lambda *s: torch.randn(*s, dtype=torch.bfloat16) * 1.6)(D, Hq * Dh) * (D ** -0.5)),
            "wo": _w((lambda *s: torch.randn(*s, dtype=torch.bfloat16) * 1.6)(Hq * Dh, D) * ((Hq * Dh) ** -0.5)),
        }
    _A_in = _A_setup()

    def _B_setup():
        B, S, D, F = 2, 1, 576, 4608
        return {
            "x": _w((lambda *s: torch.randn(*s, dtype=torch.bfloat16) * 0.4)(B, S, D)),
            "W_gate": _w((lambda *s: torch.randn(*s, dtype=torch.bfloat16) * 1.6)(D, F) * (2.0 / D) ** 0.5),
            "W_up": _w((lambda *s: torch.randn(*s, dtype=torch.bfloat16) * 1.6)(D, F) * (2.0 / D) ** 0.5),
            "W_down": _w((lambda *s: torch.randn(*s, dtype=torch.bfloat16) * 1.6)(F, D) * (1.0 / F) ** 0.5),
        }
    _B_in = _B_setup()

    return {
        "A_x": _A_in["x"],
        "A_k_cache": _A_in["k_cache"],
        "A_v_cache": _A_in["v_cache"],
        "A_wq": _A_in["wq"],
        "A_wo": _A_in["wo"],
        "B_x": _B_in["x"],
        "B_W_gate": _B_in["W_gate"],
        "B_W_up": _B_in["W_up"],
        "B_W_down": _B_in["W_down"],
    }

def reference(A_x, A_k_cache, A_v_cache, A_wq, A_wo, B_x, B_W_gate, B_W_up, B_W_down):
    def _A_ref(x, k_cache, v_cache, wq, wo):
        B, Sq, D = x.shape
        Hq, Dh = 32, 128
        Hkv = k_cache.shape[1]
        rep = Hq // Hkv
        q = (lambda x, *d: x.permute(*d))((x @ wq).reshape(B, Sq, Hq, Dh), 0, 2, 1, 3)
        k = (lambda x, n, axis: torch.repeat_interleave(x, n, dim=axis))(k_cache, rep, axis=1)
        v = (lambda x, n, axis: torch.repeat_interleave(x, n, dim=axis))(v_cache, rep, axis=1)
        scores = torch.einsum("bhqd,bhkd->bhqk", q, k) * (Dh ** -0.5)
        p = _softmax(scores, axis=-1)
        o = torch.einsum("bhqk,bhkd->bhqd", p, v)
        return (lambda x, *d: x.permute(*d))(o, 0, 2, 1, 3).reshape(B, Sq, Hq * Dh) @ wo

    def _B_ref(x, W_gate, W_up, W_down):
        gate = torch.einsum("bsd,df->bsf", x, W_gate)
        up = torch.einsum("bsd,df->bsf", x, W_up)
        gate = gate * (lambda x, dt: x.to(dt))(gate > 0, gate.dtype)
        h = gate * up
        return torch.einsum("bsf,fd->bsd", h, W_down)

    x = A_x
    xn = _layernorm(x, axis=-1)
    s = _A_ref(xn, A_k_cache, A_v_cache, A_wq, A_wo)
    g = _silu(_B_ref(xn, B_W_gate, B_W_up, B_W_down))
    return x + s * g
```

```python
import re
import sys

KNAME = "recurrent_scan__gqa_block_cached__glu_gated_reglu__decode_kernel"

HEADER = """; Kernarg layout for this problem (96 bytes, ptrs only, base s[0:1]):
"""

WS_QP = 0x00000
WS_PO = 0x20000
WS_PS = 0x48000
WS_SP = 0x50000
WS_DP = 0x80000
WS_CT = 0xF0000
WS_EP = 0x44000
WS_ST = 0x20000000

L_AUX = 0x10000
L_STG = 0x20000
L_XN = L_STG + 18432
L_Q = L_XN + 2304
L_END = L_Q + 512

SPIN = 20000


class Asm:
    def __init__(self):
        self.L = []
        self.lg = 0

    def __call__(self, s, *a):
        s = s % a if a else s
        if s.startswith("ds_"):
            if self.lg >= 15:
                self.L.append("s_waitcnt lgkmcnt(14)")
                self.lg = 14
            self.lg += 1
        m = re.search(r"lgkmcnt\((\d+)\)", s)
        if m:
            self.lg = min(self.lg, int(m.group(1)))
        self.L.append(s)

    def nop(self, n):
        self.L.append("s_nop %d" % (n - 1))


def vr(b, n=1):
    return "v%d" % b if n == 1 else "v[%d:%d]" % (b, b + n - 1)


def gen(ns=45, stamps=0, pre=0, wqflag="nt", ffnflag="nt", mimic=1, b0=1, bal=2, clr=0, fillw=0, exp=0, mix=1, ahead=0, dplate=1, cs=256, aflag="sc0 sc1", wodef=1, dry=1, depth=1, podma=1, psl=1, xloc=1, dpf="sc1", clf="sc1", qpf="sc1", dlf="sc1"):
    A = Asm()
    A(HEADER.rstrip())
    A("; @launch grid=(256,1,1) block=(320,1,1) lds=%d" % L_END)
    A('.amdgcn_target "amdgcn-amd-amdhsa--gfx950"')
    A(".text\n.globl %s\n.p2align 8\n.type %s,@function\n%s:" % (KNAME, KNAME, KNAME))

    sX, sG, sB, sH, sU, sR = "s28", "s29", "s30", "s31", "s32", "s33"
    sF, sHA, sLn = "s61", "s71", "s57"

    def sreg(k):
        return 80 + 2 * (k if k < 5 else k - 4)

    def stamp(k):
        if stamps:
            A("s_memrealtime s[%d:%d]", sreg(k), sreg(k) + 1)
            if k:
                A("s_waitcnt lgkmcnt(0)")

    def dump_stamps(lo, hi, vt):
        if not stamps:
            return
        A("s_waitcnt lgkmcnt(0)")
        A("s_mul_i32 s60, s2, 112")
        A("s_add_u32 s60, s60, 0x%x", WS_ST)
        A("v_mov_b32 v%d, s60", vt)
        A("s_mov_b64 exec, 1")
        for k in range(lo, hi):
            A("v_mov_b32 v%d, s%d", vt + 2, sreg(k))
            A("v_mov_b32 v%d, s%d", vt + 3, sreg(k) + 1)
            A("global_store_dwordx2 v%d, v[%d:%d], s[26:27] offset:%d", vt, vt + 2, vt + 3, 8 * k)
            A("s_nop 1")
        A("s_mov_b64 exec, -1")

    sE, sTag = "s70", 76

    def make_tags():
        A("; hand-off tag bytes of this launch: bytes of the entry epoch word plus 1,2,3,4")
        A("s_and_b32 s51, %s, 0x80808080", sE)
        A("s_and_b32 %s, %s, 0x7f7f7f7f", sE, sE)
        A("s_add_u32 %s, %s, 0x04030201", sE, sE)
        A("s_xor_b32 %s, %s, s51", sE, sE)
        for r in range(4):
            A("s_bfe_u32 s%d, %s, 0x%x", sTag + r, sE, (8 << 16) | (8 * r))

    def put_tags(v, vmask):
        for r in range(4):
            A("v_and_or_b32 v%d, v%d, v%d, s%d", v + r, v + r, vmask, sTag + r)

    def check_tags(v, n, vt, src=None):
        for i in range(n):
            A("v_xor_b32 v%d, s%d, v%d", v + i, sTag + (i & 3), (v if src is None else src) + i)
        A("v_or_b32 v%d, v%d, v%d", vt, v, v + 1)
        for i in range(2, n, 2):
            A("v_or3_b32 v%d, v%d, v%d, v%d", vt, vt, v + i, v + i + 1)
        A("v_and_b32 v%d, 0xff, v%d", vt, vt)
        A("v_cmp_ne_u32 vcc, 0, v%d", vt)

    def dma_rows(srd, voff, pitch, n, soff0, flag, m0base):
        if exp == 1 and pitch != 8192:
            return
        if exp == 2 and pitch != 8192:
            pitch = 128
        for i in range(n):
            k = i & 3
            if k == 0 and (i > 0 or m0base is not None):
                if isinstance(m0base, str):
                    A("s_add_u32 m0, %s, %d", m0base, 1024 * i)
                else:
                    A("s_add_u32 m0, m0, 4096") if i > 0 else A("s_mov_b32 m0, 0x%x", m0base)
            so = i * 8 * pitch - k * 1024
            if isinstance(soff0, str):
                A("s_add_u32 s53, %s, %d", soff0, so)
            else:
                A("s_mov_b32 s53, %d", soff0 + so)
            A("buffer_load_dwordx4 v%d, %s, s53 offen offset:%d %s lds", voff, srd, 1024 * k, flag)

    A("s_cmp_ge_u32 s2, 256")
    A("s_cbranch_scc1 L_end")
    stamp(0)
    A("s_load_dwordx16 s[4:19], s[0:1], 0")
    A("s_load_dwordx8 s[20:27], s[0:1], 64")
    if pre:
        A("; pull the kernel's own code lines into L2 ahead of instruction fetch")
        A("s_getpc_b64 s[52:53]")
        A("L_pc:")
        A("v_lshlrev_b32 v1, 6, v0")
        A("v_min_u32 v1, L_end-L_pc, v1")
        A("global_load_dword v127, v1, s[52:53]")
    A("v_lshrrev_b32 v1, 6, v0")
    A("v_and_b32 v0, 63, v0")
    A("v_readfirstlane_b32 s3, v1")
    A("s_and_b32 %s, s2, 7", sX)
    A("s_lshr_b32 %s, s2, 3", sG)
    if mix:
        A("s_and_b32 s51, s2, 3")
        A("s_lshl3_add_u32 s51, s51, %s", sX)
        A("s_xor_b32 %s, %s, s51", sG, sG)
    A("s_lshr_b32 %s, %s, 4", sB, sG)
    A("s_and_b32 %s, %s, 15", sH, sG)
    A("s_lshl3_add_u32 %s, %s, %s", sU, sB, sX)
    if bal == 2:
        A("; side jobs: groups 0-7 take three FFN units, the others two FFN units and six wo slices")
        A("s_add_u32 s51, %s, %s", sX, sG)
        A("s_and_b32 s51, s51, 7")
        if xloc:
            A("s_lshr_b32 %s, %s, 3", sR, sG)
            A("s_mul_i32 %s, %s, 6", sR, sR)
            A("s_add_u32 %s, %s, s51", sR, sR)
            A("s_sub_u32 %s, %s, 8", sR, sR)
            A("s_and_b32 %s, %s, 1", sHA, sR)
            A("s_lshl1_add_u32 %s, %s, %s", sHA, sX, sHA)
            A("s_lshr_b32 %s, %s, 1", sR, sR)
        else:
            A("s_mul_i32 %s, %s, 6", sR, sG)
            A("s_add_u32 %s, %s, s51", sR, sR)
            A("s_sub_u32 %s, %s, 50", sR, sR)
            A("s_and_b32 %s, %s, 15", sHA, sR)
            A("s_lshr_b32 %s, %s, 4", sR, sR)
        A("s_cmp_lt_u32 %s, 8", sG)
        A("s_cselect_b32 s64, 3, 2")
        A("s_cselect_b32 s65, 48, -16")
        A("s_cselect_b32 %s, 15, %s", sR, sR)
        A("s_mul_i32 %s, %s, s64", sF, sG)
        A("s_add_u32 %s, %s, s65", sF, sF)
        A("s_add_u32 %s, %s, s51", sF, sF)
        A("s_cmp_lt_u32 s51, s64")
        A("s_cselect_b32 %s, %s, 72", sF, sF)
        A("s_cselect_b32 %s, 15, %s", sR, sR)
    else:
        A("s_add_u32 %s, %s, %s", sR, sX, sH)
        A("s_and_b32 %s, %s, 7", sR, sR)
        A("s_lshl1_add_u32 %s, %s, %s", sR, sR, sB)
        A("s_mov_b32 %s, %s", sHA, sH)
        A("s_sub_u32 %s, %s, 9", sF, sR)
        A("s_lshl4_add_u32 %s, %s, %s", sF, sF, sH)
    A("v_lshrrev_b32 v1, 4, v0")
    A("v_and_b32 v2, 15, v0")
    A("s_cmp_eq_u32 s3, 4")
    A("s_cbranch_scc1 L_aux")

    vKd, vVd, vKr, vVr = 4, 8, 10, 14
    vQ, vK, vV = 24, 40, 56
    vS, vT = 72, 76
    vO = 84
    vM, vMc, vL, vCl, vCa, vOne = 116, 117, 118, 119, 120, 121
    vP = 122
    sOff, sK, sMask, sM0, sIt, sLast, sXor = "s44", "s45", "s46", "s47", "s48", "s49", "s50"
    sScale, sLog2e, sHi = "s54", "s55", "s56"

    A("v_xor_b32 v3, v2, v1")
    A("v_lshlrev_b32 v3, 4, v3")
    A("v_lshl_or_b32 v%d, v1, 8, v3", vKd)
    for j in range(1, 4):
        A("v_xor_b32 v%d, %d, v%d", vKd + j, 64 * j, vKd)
    A("v_lshlrev_b32 v22, 1, v1")
    A("v_xor_b32 v22, v22, v2")
    A("v_lshlrev_b32 v22, 4, v22")
    A("v_lshl_or_b32 v%d, v1, 8, v22", vVd)
    A("v_xor_b32 v%d, 0x80, v%d", vVd + 1, vVd)
    A("s_lshl_b32 s51, %s, 23", sG)
    A("s_lshl2_add_u32 %s, %s, s3", sOff, sX)
    A("s_lshl_b32 %s, %s, 12", sOff, sOff)
    A("s_lshl_b32 %s, s3, 14", sM0)
    A("s_mov_b32 s38, 0x800000")
    A("s_mov_b32 s39, 0x20000")
    A("s_mov_b32 s42, 0x800000")
    A("s_mov_b32 s43, 0x20000")
    A("s_waitcnt lgkmcnt(0)")
    A("s_add_u32 s36, s6, s51")
    A("s_addc_u32 s37, s7, 0")
    A("s_add_u32 s40, s8, s51")
    A("s_addc_u32 s41, s9, 0")
    A("s_load_dword %s, s[26:27], 0x%x", sE, WS_EP)
    if b0:
        A("s_barrier")

    def issue_item():
        A("s_mov_b32 m0, %s", sM0)
        A("s_add_u32 s51, %s, 4096", sM0)
        for j in range(4):
            A("buffer_load_dwordx4 v%d, s[36:39], %s offen offset:%d nt lds", vKd + j, sOff, 1024 * j)
        A("s_mov_b32 m0, s51")
        A("s_nop 0")
        for j in range(4):
            A("buffer_load_dwordx4 v%d, s[40:43], %s offen offset:%d nt lds", vVd + (j & 1), sOff, 1024 * j)

    A("s_mov_b32 %s, 0", sK)
    A("L_fill:")
    issue_item()
    A("s_add_u32 %s, %s, 0x20000", sOff, sOff)
    A("s_add_u32 %s, %s, 1", sK, sK)
    A("s_bitcmp1_b32 %s, 0", sK)
    A("s_cselect_b32 s51, 0, 0x10000")
    A("s_bitset1_b32 s51, 13")
    A("s_xor_b32 %s, %s, s51", sM0, sM0)
    A("s_cmp_eq_u32 %s, 4", sK)
    A("s_cbranch_scc1 L_filled")
    A("s_waitcnt vmcnt(%d)", fillw)
    A("s_branch L_fill")
    A("L_filled:")
    A("v_lshl_or_b32 v%d, v2, 8, v3", vKr)
    A("v_add_u32 v%d, %s, v%d", vKr, sM0, vKr)
    for m in range(1, 4):
        A("v_xor_b32 v%d, %d, v%d", vKr + m, 64 * m, vKr)
    A("v_lshrrev_b32 v22, 2, v0")
    A("v_and_b32 v23, 7, v22")
    A("v_lshlrev_b32 v23, 5, v23")
    A("v_lshl_or_b32 v23, v22, 8, v23")
    A("v_and_b32 v22, 3, v0")
    A("v_lshl_or_b32 v23, v22, 3, v23")
    A("s_add_u32 s51, %s, 4096", sM0)
    A("v_add_u32 v%d, s51, v23", vVr)
    for t in range(1, 8):
        A("v_xor_b32 v%d, %d, v%d", vVr + t, 32 * t, vVr)
    for i in range(0, 32, 2):
        A("v_mov_b64 v[%d:%d], 0", vO + i, vO + i + 1)
    A("v_mov_b32 v%d, 0xff800000", vM)
    A("v_mov_b32 v%d, 0xff800000", vMc)
    A("v_mov_b32 v%d, 0", vL)
    A("v_mov_b32 v%d, 1", vOne)
    A("s_mul_i32 s51, %s, %d", sG, cs)
    A("s_add_u32 s51, s51, 0x%x", WS_CT)
    A("v_mov_b32 v%d, s51", vCa)
    A("v_and_b32 v22, 1, v0")
    A("v_lshlrev_b32 v22, 8, v22")
    A("v_lshl_or_b32 v22, v1, 4, v22")
    A("v_add_u32 v22, 0x%x, v22", L_Q)
    vWa, vPo, vPa, vSa, vWo, vMk = 124, 128, 129, 130, 131, 132
    A("s_lshr_b32 s58, s3, 1")
    A("s_lshl1_add_u32 s59, %s, s58", sHA)
    A("s_lshl_b32 s51, s59, 12")
    A("s_add_u32 s51, s51, 0x%x", WS_PO)
    if podma:
        A("s_add_u32 s72, s26, s51")
        A("s_addc_u32 s73, s27, 0")
        A("s_mov_b32 s74, 4096")
        A("s_mov_b32 s75, 0x20000")
    else:
        A("v_lshlrev_b32 v%d, 4, v1", vPo)
        A("v_lshl_or_b32 v%d, v2, 8, v%d", vPo, vPo)
        A("v_add_u32 v%d, s51, v%d", vPo, vPo)
    if psl:
        A("s_lshl_b32 s51, %s, 7", sHA)
        A("s_add_u32 s51, s51, s58")
        A("s_lshl4_add_u32 s51, s51, 0x%x", WS_PS)
        A("v_lshl_add_u32 v%d, v2, 7, s51", vPa)
    else:
        A("s_lshl_b32 s51, s59, 8")
        A("s_add_u32 s51, s51, 0x%x", WS_PS)
        A("v_lshl_add_u32 v%d, v2, 4, s51", vPa)
    A("v_lshrrev_b32 v%d, 2, v2", vWa)
    A("v_lshl_or_b32 v%d, v1, 3, v%d", vWa, vWa)
    A("v_lshlrev_b32 v%d, 7, v%d", vWa, vWa)
    A("v_and_b32 v23, 3, v0")
    A("v_lshl_or_b32 v%d, v23, 3, v%d", vWa, vWa)
    A("v_lshrrev_b32 v23, 3, v2")
    A("v_lshl_or_b32 v%d, v23, 5, v%d", vWa, vWa)
    A("s_lshl_b32 s51, s58, 14")
    A("s_add_u32 s51, s51, 0x%x", L_AUX)
    A("s_and_b32 s58, s3, 1")
    A("s_lshl_b32 s52, s58, 6")
    A("v_xor_b32 v%d, s52, v%d", vWa, vWa)
    A("v_add_u32 v%d, s51, v%d", vWa, vWa)
    A("v_xor_b32 v%d, 0x240, v%d", vWa + 1, vWa)
    A("v_xor_b32 v%d, 0x20, v%d", vWa + 2, vWa)
    A("v_xor_b32 v%d, 0x260, v%d", vWa + 3, vWa)
    A("s_mul_i32 s51, s59, 4608")
    A("s_lshl1_add_u32 s52, %s, s58", sR)
    A("s_lshl_b32 s52, s52, 8")
    A("s_add_u32 s51, s51, s52")
    A("s_add_u32 s51, s51, 0x%x", WS_SP)
    A("v_lshlrev_b32 v23, 6, v1")
    A("v_lshl_or_b32 v23, v2, 4, v23")
    A("v_add_u32 v%d, s51, v23", vSa)
    A("v_mov_b32 v%d, 0xffffff00", vMk)
    A("v_lshrrev_b32 v23, 3, v0")
    A("v_and_b32 v%d, 6, v23", vWo)
    A("v_xor_b32 v%d, v0, v%d", vWo, vWo)
    A("v_and_b32 v%d, 7, v%d", vWo, vWo)
    A("v_mul_u32_u24 v23, 1152, v23")
    A("v_lshl_add_u32 v%d, v%d, 4, v23", vWo, vWo)
    A("s_mov_b32 s62, 0xcccccccc")
    A("s_mov_b32 s63, 0xcccccccc")
    A("s_mov_b32 %s, 0xfffffff2", sMask)
    A("s_mov_b32 %s, 0x140000", sIt)
    A("s_mov_b32 %s, 0", sLast)
    A("s_mov_b32 %s, 0", sLn)
    A("s_mov_b32 %s, 0x3db504f3", sScale)
    A("s_mov_b32 %s, 0x3fb8aa3b", sLog2e)
    A("s_mov_b32 %s, 0xffff0000", sHi)
    A("s_waitcnt lgkmcnt(0)")
    make_tags()
    stamp(1)
    A("s_barrier")
    stamp(2)
    for m in range(4):
        A("ds_read_b128 %s, v22 offset:%d", vr(vQ + 4 * m, 4), 64 * m)
    A("s_waitcnt vmcnt(24) lgkmcnt(2)")

    A("L_loop:")
    A("s_bitcmp1_b32 %s, 0", sMask)
    A("s_cbranch_scc0 L_compute")
    if ahead:
        A("s_cmp_lt_u32 %s, %d", sK, ns - 1)
        A("s_cbranch_scc1 L_static")
        A("s_cmp_lt_u32 %s, %d", sK, ns)
        A("s_waitcnt vmcnt(1)")
        A("s_cbranch_scc1 L_issue")
        A("v_readlane_b32 s51, v%d, %s", vCl, sLn)
    else:
        A("s_cmp_lt_u32 %s, %d", sK, ns)
        A("s_waitcnt vmcnt(0)")
        A("s_cbranch_scc1 L_issue")
        A("v_readfirstlane_b32 s51, v%d", vCl)
    A("s_add_u32 s51, s51, %d", ns * 32 + 1)
    A("s_cmp_ge_u32 s51, 2048")
    A("s_cselect_b32 %s, 1, 0", sLast)
    A("s_cbranch_scc1 %s", "L_last" if wodef else "L_compute")
    A("s_lshl_b32 %s, s51, 12", sOff)
    A("L_issue:")
    issue_item()
    A("s_add_u32 %s, %s, 0x20000", sOff, sOff)
    A("s_xor_b32 %s, %s, 0x2000", sM0, sM0)
    A("s_add_u32 %s, %s, 1", sK, sK)
    A("s_cmp_lt_u32 %s, %d", sK, ns - ahead)
    A("s_cbranch_scc1 L_compute")
    if ahead:
        A("s_lshl_b64 exec, 1, %s", sLn)
        A("s_xor_b32 %s, %s, 1", sLn, sLn)
    else:
        A("s_mov_b64 exec, 1")
    A("global_atomic_add v%d, v%d, v%d, s[26:27] %s", vCl, vCa, vOne, aflag)
    A("s_mov_b64 exec, -1")
    A("L_compute:")
    for m in range(4):
        A("ds_read_b128 %s, v%d", vr(vK + 4 * m, 4), vKr + m)
    for t in range(8):
        A("ds_read_b64_tr_b16 %s, v%d", vr(vV + 2 * t, 2), vVr + t)
    A("s_ashr_i32 %s, %s, 1", sMask, sMask)
    A("s_lshr_b32 %s, %s, 1", sIt, sIt)
    A("s_and_b32 %s, %s, 0x10000", sXor, sIt)
    A("s_bitset1_b32 %s, 13", sXor)
    for m in range(4):
        A("s_waitcnt lgkmcnt(%d)", 11 - m)
        A("v_mfma_f32_16x16x32_bf16 %s, %s, %s, %s", vr(vS, 4), vr(vK + 4 * m, 4), vr(vQ + 4 * m, 4),
          "0" if m == 0 else vr(vS, 4))
    for i in range(12):
        A("v_xor_b32 v%d, %s, v%d", vKr + i, sXor, vKr + i)
    if mimic:
        A("; scores are rounded to bf16 before and after the 1/sqrt(128) scale")
        A("v_cvt_pk_bf16_f32 v%d, v%d, v%d", vT, vS, vS + 1)
        A("v_cvt_pk_bf16_f32 v%d, v%d, v%d", vT + 1, vS + 2, vS + 3)
        A("v_lshlrev_b32 v%d, 16, v%d", vS, vT)
        A("v_and_b32 v%d, %s, v%d", vS + 1, sHi, vT)
        A("v_lshlrev_b32 v%d, 16, v%d", vS + 2, vT + 1)
        A("v_and_b32 v%d, %s, v%d", vS + 3, sHi, vT + 1)
    for r in range(4):
        A("v_mul_f32 v%d, %s, v%d", vS + r, sScale, vS + r)
    if mimic:
        A("v_cvt_pk_bf16_f32 v%d, v%d, v%d", vT, vS, vS + 1)
        A("v_cvt_pk_bf16_f32 v%d, v%d, v%d", vT + 1, vS + 2, vS + 3)
        A("v_lshlrev_b32 v%d, 16, v%d", vS, vT)
        A("v_and_b32 v%d, %s, v%d", vS + 1, sHi, vT)
        A("v_lshlrev_b32 v%d, 16, v%d", vS + 2, vT + 1)
        A("v_and_b32 v%d, %s, v%d", vS + 3, sHi, vT + 1)
    A("v_max3_f32 v%d, v%d, v%d, v%d", vT, vS, vS + 1, vS + 2)
    A("v_max_f32 v%d, v%d, v%d", vT, vT, vS + 3)
    A("v_cmp_gt_f32 vcc, v%d, v%d", vT, vM)
    A("s_cbranch_vccnz L_newmax")
    A("L_exp:")
    for r in range(4):
        A("v_fma_f32 v%d, v%d, %s, -v%d", vS + r, vS + r, sLog2e, vMc)
    for r in range(4):
        A("v_exp_f32 v%d, v%d", vS + r, vS + r)
    A("s_nop 0")
    A("v_cvt_pk_bf16_f32 v%d, v%d, v%d", vP, vS, vS + 1)
    A("v_cvt_pk_bf16_f32 v%d, v%d, v%d", vP + 1, vS + 2, vS + 3)
    A("v_add_f32 v%d, v%d, v%d", vS, vS, vS + 1)
    A("v_add_f32 v%d, v%d, v%d", vS + 2, vS + 2, vS + 3)
    A("s_waitcnt lgkmcnt(0)")
    for t in range(8):
        A("v_mfma_f32_16x16x16_bf16 %s, %s, %s, %s", vr(vO + 4 * t, 4), vr(vV + 2 * t, 2), vr(vP, 2), vr(vO + 4 * t, 4))
        if t == 0:
            A("v_add_f32 v%d, v%d, v%d", vS, vS, vS + 2)
        if t == 1:
            A("v_add_f32 v%d, v%d, v%d", vL, vL, vS)
    A("s_cmp_lg_u32 %s, 0x14000", sIt)
    A("s_cbranch_scc1 L_nobar")
    A("s_barrier")
    A("L_nobar:")
    A("s_cmp_eq_u32 %s, 0", sLast)
    A("s_cbranch_scc1 L_loop")
    A("s_branch L_done")
    if ahead:
        A("L_static:")
        A("s_waitcnt vmcnt(0)")
        A("s_branch L_issue")

    if wodef:
        A("L_last:")
        A("s_cmp_ge_u32 %s, 9", sR)
        A("s_cbranch_scc1 L_compute")
        A("s_lshl2_add_u32 s51, %s, s3", sHA)
        A("s_mul_i32 s51, s51, %d", 64 * 1152)
        A("s_lshl_b32 s52, %s, 7", sR)
        A("s_add_u32 s51, s51, s52")
        A("s_add_u32 s36, s12, s51")
        A("s_addc_u32 s37, s13, 0")
        A("s_sub_u32 s38, %d, s52", 64 * 1152)
        A("s_lshl_b32 s51, s3, 13")
        A("s_add_u32 s51, s51, 0x%x", L_AUX)
        dma_rows("s[36:39]", vWo, 1152, 8, 0, ffnflag, "s51")
        A("s_branch L_compute")

    A("L_newmax:")
    A("v_mov_b32 v%d, v%d", vT + 1, vT)
    A("s_nop 1")
    A("v_permlane32_swap_b32 v%d, v%d", vT, vT + 1)
    A("v_max_f32 v%d, v%d, v%d", vT, vT, vT + 1)
    A("v_mov_b32 v%d, v%d", vT + 1, vT)
    A("s_nop 1")
    A("v_permlane16_swap_b32 v%d, v%d", vT, vT + 1)
    A("v_max3_f32 v%d, v%d, v%d, v%d", vM, vM, vT, vT + 1)
    A("v_mul_f32 v%d, %s, v%d", vT, sLog2e, vM)
    A("v_sub_f32 v%d, v%d, v%d", vT + 2, vMc, vT)
    A("v_exp_f32 v%d, v%d", vT + 2, vT + 2)
    A("v_mov_b32 v%d, v%d", vMc, vT)
    A("v_mul_f32 v%d, v%d, v%d", vL, vL, vT + 2)
    for i in range(0, 32, 2):
        A("v_pk_mul_f32 %s, %s, %s op_sel_hi:[1,0]", vr(vO + i, 2), vr(vO + i, 2), vr(vT + 2, 2))
    A("s_branch L_exp")

    A("L_done:")
    stamp(3)
    stamp(4)
    A("v_mov_b32 v%d, v%d", vT, vL)
    A("v_and_b32 v%d, 1, v0", vT + 2)
    A("v_lshlrev_b32 v%d, 9, v%d", vT + 3, vT + 2)
    A("v_permlane32_swap_b32 v%d, v%d", vL, vT)
    A("v_add_f32 v%d, v%d, v%d", vL, vL, vT)
    A("v_mov_b32 v%d, v%d", vT, vL)
    A("s_lshl_b32 s51, s3, 14")
    A("v_lshl_or_b32 v%d, v1, 4, v%d", vT + 3, vT + 3)
    A("v_permlane16_swap_b32 v%d, v%d", vL, vT)
    A("v_add_f32 v%d, v%d, v%d", vL, vL, vT)
    A("v_add_u32 v%d, s51, v%d", vT + 3, vT + 3)
    A("v_lshl_add_u32 v%d, v%d, 3, s51", vT + 2, vT + 2)
    A("s_mov_b32 exec_lo, 0x00030003")
    A("s_mov_b32 exec_hi, 0x00030003")
    for t in range(8):
        A("ds_write_b128 v%d, %s offset:%d", vT + 3, vr(vO + 4 * t, 4), 64 * t)
    A("ds_write_b32 v%d, v%d offset:1024", vT + 2, vMc)
    A("ds_write_b32 v%d, v%d offset:1028", vT + 2, vL)
    A("s_mov_b64 exec, -1")
    A("s_add_u32 m0, s51, 0x2000")
    A("s_cmp_ge_u32 %s, 9", sR)
    A("s_waitcnt lgkmcnt(0)")
    A("s_barrier")
    A("s_cbranch_scc1 L_main_end")

    vW, vB, vSt, vA0, vA1 = 40, 24, 72, 84, 88

    def po_poll():
        for m in range(4):
            if podma:
                A("buffer_load_dwordx4 v%d, s[72:75], 0 offen offset:%d sc1 lds", vKd + m, 1024 * m)
            else:
                A("global_load_dwordx4 %s, v%d, s[26:27] offset:%d sc1", vr(vB + 4 * m, 4), vPo, 64 * m)
        A("global_load_dwordx2 %s, v%d, s[26:27] sc1", vr(vSt, 2), vPa)

    po_poll()
    if podma:
        for m in range(4):
            A("v_or_b32 v%d, 0x2000, v%d", vKr + m, vKr + m)
    A("s_mov_b32 s60, %d", SPIN)
    if wodef:
        A("s_waitcnt vmcnt(5)")
        A("s_barrier")
    for c in range(2):
        for m in range(4):
            for e in range(2):
                A("ds_read_b64_tr_b16 %s, v%d offset:%d", vr(vW + 16 * c + 4 * m + 2 * e, 2), vWa + 2 * c + e, 4096 * m)
    A("s_waitcnt lgkmcnt(0)")
    if dry:
        A("; first pass runs with the store masked off while the first fetch is in flight")
        A("s_mov_b32 s58, 0")
        A("s_branch L_po_ok")
        A("L_po_real:")
    A("s_mov_b32 s58, 0x000f000f")
    if depth == 2:
        po_poll()
    A("L_po_poll:")
    A("s_waitcnt vmcnt(%d)", 5 * (depth - 1))
    if podma:
        for m in range(4):
            A("ds_read_b128 %s, v%d", vr(vB + 4 * m, 4), vKr + m)
        A("v_max_u32 v%d, v%d, v%d", vT, vSt, vSt + 1)
        for m in range(4):
            A("s_waitcnt lgkmcnt(%d)", 3 - m)
            A("v_max3_u32 v%d, v%d, v%d, v%d", vT, vT, vB + 4 * m, vB + 4 * m + 1)
            A("v_max3_u32 v%d, v%d, v%d, v%d", vT, vT, vB + 4 * m + 2, vB + 4 * m + 3)
    else:
        A("v_max3_u32 v%d, v%d, v%d, v%d", vT, vB, vB + 1, vB + 2)
        A("v_max3_u32 v%d, v%d, v%d, v%d", vT + 1, vB + 3, vB + 4, vB + 5)
        for i in range(6, 14, 4):
            A("v_max3_u32 v%d, v%d, v%d, v%d", vT, vT, vB + i, vB + i + 1)
            A("v_max3_u32 v%d, v%d, v%d, v%d", vT + 1, vT + 1, vB + i + 2, vB + i + 3)
        A("v_max3_u32 v%d, v%d, v%d, v%d", vT, vT, vB + 14, vB + 15)
        A("v_max3_u32 v%d, v%d, v%d, v%d", vT + 1, vT + 1, vSt, vSt + 1)
        A("v_max_u32 v%d, v%d, v%d", vT, vT, vT + 1)
    A("v_cmp_eq_u32 vcc, -1, v%d", vT)
    A("s_cbranch_vccz L_po_ok")
    if not podma:
        A("s_mov_b64 exec, vcc")
    po_poll()
    if not podma:
        A("s_mov_b64 exec, -1")
    A("s_sub_u32 s60, s60, 1")
    A("s_cmp_lg_u32 s60, 0")
    A("s_cbranch_scc1 L_po_poll")
    A("L_po_ok:")
    stamp(4)
    for m in range(4):
        for c in range(2):
            acc = (vA0, vA1)[c]
            A("v_mfma_f32_16x16x32_bf16 %s, %s, %s, %s", vr(acc, 4), vr(vW + 16 * c + 4 * m, 4), vr(vB + 4 * m, 4),
              "0" if m == 0 else vr(acc, 4))
    dp = "row_mask:0xf bank_mask:0xf"
    A("v_max_f32_dpp v%d, v%d, v%d row_ror:8 %s", vT, vSt, vSt, dp)
    A("s_nop 1")
    A("v_max_f32_dpp v%d, v%d, v%d row_ror:4 %s", vT, vT, vT, dp)
    A("s_nop 1")
    A("v_max_f32_dpp v%d, v%d, v%d row_ror:2 %s", vT, vT, vT, dp)
    A("v_sub_f32 v%d, v%d, v%d", vT, vSt, vT)
    A("v_exp_f32 v%d, v%d", vT, vT)
    A("s_nop 0")
    A("v_mul_f32 v%d, v%d, v%d", vT + 1, vT, vSt + 1)
    A("s_nop 1")
    A("v_add_f32_dpp v%d, v%d, v%d row_ror:8 %s", vT + 1, vT + 1, vT + 1, dp)
    A("s_nop 1")
    A("v_add_f32_dpp v%d, v%d, v%d row_ror:4 %s", vT + 1, vT + 1, vT + 1, dp)
    A("s_nop 1")
    A("v_add_f32_dpp v%d, v%d, v%d row_ror:2 %s", vT + 1, vT + 1, vT + 1, dp)
    A("v_rcp_f32 v%d, v%d", vT + 1, vT + 1)
    A("s_nop 0")
    A("v_mul_f32 v%d, v%d, v%d", vT, vT, vT + 1)
    vKeep, vGive = 92, 96
    for r in range(4):
        A("v_cndmask_b32 v%d, v%d, v%d, s[62:63]", vKeep + r, vA0 + r, vA1 + r)
        A("v_cndmask_b32 v%d, v%d, v%d, s[62:63]", vGive + r, vA1 + r, vA0 + r)
    for r in range(4):
        A("v_mul_f32 v%d, v%d, v%d", vGive + r, vT, vGive + r)
    for r in range(4):
        A("v_mul_f32 v%d, v%d, v%d", vKeep + r, vT, vKeep + r)
    for r in range(4):
        A("v_add_f32_dpp v%d, v%d, v%d quad_perm:[2,3,0,1] %s", vKeep + r, vGive + r, vKeep + r, dp)
    for r in range(4):
        A("v_add_f32_dpp v%d, v%d, v%d row_ror:4 %s", vKeep + r, vKeep + r, vKeep + r, dp)
    for r in range(4):
        A("v_add_f32_dpp v%d, v%d, v%d row_ror:8 %s", vKeep + r, vKeep + r, vKeep + r, dp)
    put_tags(vKeep, vMk)
    if dry:
        A("s_cmp_eq_u32 s58, 0")
        A("s_cbranch_scc1 L_po_real")
    A("s_mov_b32 exec_lo, s58")
    A("s_mov_b32 exec_hi, s58")
    A("global_store_dwordx4 v%d, %s, s[26:27] sc1", vSa, vr(vKeep, 4))
    if stamps:
        A("s_mov_b64 exec, -1")
    A("L_main_end:")
    if stamps:
        A("s_cmp_lg_u32 s3, 0")
        A("s_cbranch_scc1 L_end")
        dump_stamps(1, 5, 100)
    A("s_endpgm")

    A("L_aux:")
    aX = 8
    aF = 20
    aSw, aXo, aWq, aQa, aPo, aNeg = 3, 4, 5, 6, 7, 40
    aTr = 44
    aT = 48
    aB = 56
    aA = 76
    aAc = 108
    aAu = 124
    aFl, aD = 140, 144
    sCb, sRb = "s34", "s35"
    A("v_lshrrev_b32 v%d, 3, v0", aT)
    A("v_and_b32 v%d, 6, v%d", aT + 1, aT)
    A("v_and_b32 v%d, 7, v0", aSw)
    A("v_xor_b32 v%d, v%d, v%d", aSw, aSw, aT + 1)
    A("v_lshlrev_b32 v%d, 4, v%d", aSw, aSw)
    A("v_lshl_or_b32 v%d, v%d, 13, v%d", aWq, aT, aSw)
    A("v_lshrrev_b32 v%d, 5, v0", aT + 1)
    A("v_and_b32 v%d, 31, v0", aXo)
    A("v_lshlrev_b32 v%d, 2, v%d", aXo, aXo)
    A("s_movk_i32 s62, 1152")
    A("v_mad_u32_u24 v%d, v%d, s62, v%d", aXo, aT + 1, aXo)
    A("v_mov_b64 v[%d:%d], -1", aNeg, aNeg + 1)
    A("v_mov_b64 v[%d:%d], -1", aNeg + 2, aNeg + 3)
    A("s_lshl1_add_u32 s52, %s, %s", sX, sB)
    A("s_lshl_b32 s51, %s, 5", sH)
    A("s_add_u32 s52, s52, s51")
    A("s_lshl_b32 s51, s52, 8")
    A("s_add_u32 s51, s51, 0x%x", WS_PO)
    A("v_and_b32 v%d, 1, v1", aT)
    A("v_lshlrev_b32 v%d, 12, v%d", aT + 1, aT)
    A("v_lshl_or_b32 v%d, v2, 4, v%d", aT + 1, aT + 1)
    A("v_add_u32 v%d, s51, v%d", aPo, aT + 1)
    if psl:
        A("s_lshl1_add_u32 s52, %s, %s", sX, sB)
        A("s_lshl4_add_u32 s52, %s, s52", sH)
        A("s_lshl_b32 s51, s52, 7")
        A("s_add_u32 s51, s51, 0x%x", WS_PS)
    else:
        A("s_lshl4_add_u32 s51, s52, 0x%x", WS_PS)
    A("s_mov_b32 exec_lo, 0")
    A("v_lshl_add_u32 v%d, v%d, %d, s51", aPo, aT, 4 if psl else 8)
    A("s_mov_b32 exec_lo, -1")
    A("s_mul_i32 s51, %s, %d", sG, cs)
    A("s_add_u32 s51, s51, 0x%x", WS_CT)
    A("v_writelane_b32 v%d, s51, 33", aPo)
    A("s_cmp_eq_u32 %s, 0", sX)
    A("s_cselect_b32 s63, 2, 0")
    A("s_or_b32 s63, s63, 0x00010001")
    A("s_and_b32 %s, %s, 3", sCb, sU)
    A("s_lshr_b32 %s, %s, 2", sRb, sU)
    A("s_mul_i32 s51, %s, %d", sRb, 144 * 8192)
    A("s_lshl2_add_u32 s52, %s, %s", sH, sCb)
    A("s_lshl_b32 s52, s52, 7")
    A("s_add_u32 s51, s51, s52")
    A("s_sub_u32 s38, %d, s52", 144 * 8192)
    A("s_mov_b32 s39, 0x20000")
    A("s_mov_b32 m0, 0x%x", L_STG)
    A("s_waitcnt lgkmcnt(0)")
    stamp(9)

    def clear():
        A("; reset the mailbox and the counter to all ones")
        A("s_mov_b32 exec_hi, s63")
        A("global_store_dwordx4 v%d, %s, s[26:27] %s", aPo, vr(aNeg, 4), clf)
        A("s_mov_b32 exec_hi, -1")

    if clr == 0:
        clear()
    for i in range(9):
        A("global_load_dword v%d, v%d, s[4:5] offset:%d", aX + i, aXo, 128 * i)
    A("s_add_u32 s36, s10, s51")
    A("s_addc_u32 s37, s11, 0")
    A("s_load_dword %s, s[26:27], 0x%x", sE, WS_EP)

    dma_rows("s[36:39]", aWq, 8192, 18, 0, wqflag, None)
    if clr == 1:
        clear()
    if b0:
        A("s_barrier")
    stamp(10)

    A("s_lshl2_add_u32 s51, %s, %s", sH, sRb)
    A("s_lshl3_add_u32 s51, s51, %s", sCb)
    A("s_lshl_b32 s51, s51, 8")
    A("v_bfe_u32 v%d, v0, 2, 1", aT)
    A("v_lshlrev_b32 v%d, 10, v%d", aT, aT)
    A("v_lshl_or_b32 v%d, v1, 6, v%d", aT, aT)
    A("v_and_b32 v%d, 3, v0", aT + 1)
    A("v_lshl_or_b32 v%d, v%d, 4, v%d", aT, aT + 1, aT)
    A("v_add_u32 v%d, s51, v%d", aQa, aT)

    A("s_mov_b32 %s, 0xffff0000", sHi)
    A("v_lshrrev_b32 v%d, 2, v0", aT)
    A("v_bfe_u32 v%d, v0, 3, 2", aT + 1)
    A("v_lshlrev_b32 v%d, 5, v%d", aT + 1, aT + 1)
    A("v_lshl_or_b32 v%d, v%d, 7, v%d", aT + 1, aT, aT + 1)
    A("v_and_b32 v%d, 3, v0", aT)
    A("v_lshl_or_b32 v%d, v%d, 3, v%d", aT + 1, aT, aT + 1)
    A("v_add_u32 v%d, 0x%x, v%d", aTr, L_STG, aT + 1)
    for c in range(1, 4):
        A("v_xor_b32 v%d, %d, v%d", aTr + c, 32 * c, aTr)
    A("v_mov_b32 v%d, 0xffffff00", aFl)
    A("s_waitcnt lgkmcnt(0)")
    make_tags()
    A("s_waitcnt vmcnt(18)")
    stamp(11)
    for i in range(9):
        A("v_lshlrev_b32 v%d, 16, v%d", aF + 2 * i, aX + i)
        A("v_and_b32 v%d, %s, v%d", aF + 2 * i + 1, sHi, aX + i)

    def tree(op, src, n, dst):
        A("v_pk_add_f32 %s, %s, %s", vr(dst, 2), vr(src, 2), vr(src + 2, 2))
        for i in range(4, n, 2):
            A("v_pk_add_f32 %s, %s, %s", vr(dst, 2), vr(dst, 2), vr(src + i, 2))
        A("v_add_f32 v%d, v%d, v%d", dst, dst, dst + 1)

    def red32(v):
        for k in (8, 4, 2, 1):
            A("s_nop 1")
            A("v_add_f32_dpp v%d, v%d, v%d row_ror:%d %s", v, v, v, k, dp)
        A("v_mov_b32 v%d, v%d", v + 1, v)
        A("s_nop 1")
        A("v_permlane16_swap_b32 v%d, v%d", v, v + 1)
        A("v_add_f32 v%d, v%d, v%d", v, v, v + 1)

    A("s_mov_b32 s51, 0x3ae38e39")
    tree("add", aF, 18, aT)
    red32(aT)
    A("v_mul_f32 v%d, s51, v%d", aT + 2, aT)
    for i in range(0, 18, 2):
        A("v_pk_add_f32 %s, %s, %s op_sel_hi:[1,0] neg_lo:[0,1] neg_hi:[0,1]", vr(aB + i, 2), vr(aF + i, 2), vr(aT + 2, 2))
    A("v_pk_mul_f32 %s, %s, %s", vr(aT, 2), vr(aB, 2), vr(aB, 2))
    for i in range(2, 18, 2):
        A("v_pk_fma_f32 %s, %s, %s, %s", vr(aT, 2), vr(aB + i, 2), vr(aB + i, 2), vr(aT, 2))
    A("v_add_f32 v%d, v%d, v%d", aT, aT, aT + 1)
    red32(aT)
    A("v_mul_f32 v%d, s51, v%d", aT, aT)
    A("v_cvt_pk_bf16_f32 v%d, v%d, v%d", aT, aT, aT + 2)
    A("v_and_b32 v%d, %s, v%d", aT + 2, sHi, aT)
    A("v_lshlrev_b32 v%d, 16, v%d", aT, aT)
    A("v_add_f32 v%d, 0x3727c5ac, v%d", aT, aT)
    A("v_cvt_pk_bf16_f32 v%d, v%d, v%d", aT, aT, aT)
    A("v_lshlrev_b32 v%d, 16, v%d", aT, aT)
    A("v_sqrt_f32 v%d, v%d", aT, aT)
    for i in range(0, 18, 2):
        A("v_pk_add_f32 %s, %s, %s op_sel_hi:[1,0] neg_lo:[0,1] neg_hi:[0,1]", vr(aF + i, 2), vr(aF + i, 2), vr(aT + 2, 2))
    A("v_cvt_pk_bf16_f32 v%d, v%d, v%d", aT, aT, aT)
    A("v_lshlrev_b32 v%d, 16, v%d", aT, aT)
    A("v_rcp_f32 v%d, v%d", aT + 4, aT)
    for i in range(9):
        A("v_cvt_pk_bf16_f32 v%d, v%d, v%d", aX + i, aF + 2 * i, aF + 2 * i + 1)
    for i in range(9):
        A("v_lshlrev_b32 v%d, 16, v%d", aF + 2 * i, aX + i)
        A("v_and_b32 v%d, %s, v%d", aF + 2 * i + 1, sHi, aX + i)
    for i in range(0, 18, 2):
        A("v_pk_mul_f32 %s, %s, %s op_sel_hi:[1,0]", vr(aB + i, 2), vr(aF + i, 2), vr(aT + 4, 2))
    for i in range(0, 18, 2):
        A("v_pk_fma_f32 %s, %s, %s, %s op_sel_hi:[1,0,1] neg_lo:[1,0,0] neg_hi:[1,0,0]", vr(aF + i, 2), vr(aB + i, 2), vr(aT, 2), vr(aF + i, 2))
    for i in range(0, 18, 2):
        A("v_pk_fma_f32 %s, %s, %s, %s op_sel_hi:[1,0,1]", vr(aB + i, 2), vr(aF + i, 2), vr(aT + 4, 2), vr(aB + i, 2))
    A("v_add_u32 v%d, 0x%x, v%d", aT, L_XN, aXo)
    for i in range(9):
        A("v_cvt_pk_bf16_f32 v%d, v%d, v%d", aX + i, aB + 2 * i, aB + 2 * i + 1)
        A("ds_write_b32 v%d, v%d offset:%d", aT, aX + i, 128 * i)
    A("s_mul_i32 s51, %s, 288", sRb)
    A("s_add_u32 s51, s51, 0x%x", L_XN)
    A("v_bfe_u32 v%d, v0, 2, 1", aT)
    A("v_mul_u32_u24 v%d, 1152, v%d", aT, aT)
    A("v_lshl_add_u32 v%d, v1, 3, v%d", aT, aT)
    A("v_add_u32 v%d, s51, v%d", aT, aT)
    for st in range(9):
        A("ds_read_b64 %s, v%d offset:%d", vr(aB + 2 * st, 2), aT, 32 * st)
    stamp(12)
    A("s_waitcnt vmcnt(%d) lgkmcnt(0)", clr)
    stamp(5)

    def trread(dst, c, off):
        A("ds_read_b64_tr_b16 %s, v%d offset:%d", vr(dst, 2), aTr + c, off)

    for kk in range(2):
        for c in range(4):
            trread(aA + 16 * kk + 4 * c, c, 4096 * kk)
            trread(aA + 16 * kk + 4 * c + 2, c, 4096 * kk + 2048)
    for kk in range(4):
        h = kk & 1
        A("s_waitcnt lgkmcnt(%d)", 8 if kk < 3 else 4)
        for c in range(4):
            A("v_mfma_f32_16x16x32_bf16 %s, %s, %s, %s", vr(aAc + 4 * c, 4), vr(aA + 16 * h + 4 * c, 4), vr(aB + 4 * kk, 4),
              "0" if kk == 0 else vr(aAc + 4 * c, 4))
        if kk < 2:
            for c in range(4):
                trread(aA + 16 * h + 4 * c, c, 4096 * (kk + 2))
                trread(aA + 16 * h + 4 * c + 2, c, 4096 * (kk + 2) + 2048)
        if kk == 2:
            for c in range(4):
                trread(aA + 4 * c, c, 16384)
    A("s_waitcnt lgkmcnt(0)")
    for c in range(4):
        A("v_mfma_f32_16x16x16_bf16 %s, %s, %s, %s", vr(aAc + 4 * c, 4), vr(aA + 4 * c, 2), vr(aB + 16, 2), vr(aAc + 4 * c, 4))
    A("s_mov_b32 s64, 0x22222222")
    A("s_mov_b32 s65, 0x22222222")
    A("s_mov_b32 s66, 0x44444444")
    A("s_mov_b32 s67, 0x44444444")
    A("s_mov_b32 s68, 0x88888888")
    A("s_mov_b32 s69, 0x88888888")
    A("s_mov_b32 s60, %d", SPIN)
    A("s_lshl3_add_u32 s51, %s, %s", sH, sB)
    A("s_lshl_b32 s51, s51, 10")
    A("v_lshl_add_u32 v%d, v0, 4, s51", aT + 4)
    A("v_add_u32 v%d, 0x1000, v%d", aT + 5, aT + 4)
    for c in range(1, 4):
        for r in range(4):
            A("v_cndmask_b32 v%d, v%d, v%d, s[%d:%d]", aAc + r, aAc + r, aAc + 4 * c + r, 62 + 2 * c, 63 + 2 * c)
    put_tags(aAc, aFl)
    A("s_waitcnt vmcnt(0)")
    A("s_mov_b32 exec_lo, 0x00ff00ff")
    A("s_mov_b32 exec_hi, 0x00ff00ff")
    A("global_store_dwordx4 v%d, %s, s[26:27] %s", aQa, vr(aAc, 4), qpf)
    A("s_mov_b64 exec, -1")
    stamp(6)
    A("s_mov_b32 s60, %d", SPIN)
    A("L_q_poll:")
    for i in range(4):
        A("global_load_dwordx4 %s, v%d, s[26:27] offset:%d sc1", vr(aD + 4 * i, 4), aT + 4 + (i >> 1), 2048 * (i & 1))
    A("s_sub_u32 s60, s60, 1")
    A("s_cmp_eq_u32 s60, 0")
    A("s_waitcnt vmcnt(0)")
    A("s_cbranch_scc1 L_q_ok")
    check_tags(aD, 16, aT)
    A("s_cbranch_vccnz L_q_poll")
    A("L_q_ok:")
    for h in range(2):
        A("v_pk_add_f32 %s, %s, %s", vr(aD + 2 * h, 2), vr(aD + 2 * h, 2), vr(aD + 4 + 2 * h, 2))
        A("v_pk_add_f32 %s, %s, %s", vr(aD + 8 + 2 * h, 2), vr(aD + 8 + 2 * h, 2), vr(aD + 12 + 2 * h, 2))
    for h in range(2):
        A("v_pk_add_f32 %s, %s, %s", vr(aD + 2 * h, 2), vr(aD + 2 * h, 2), vr(aD + 8 + 2 * h, 2))
    A("v_and_b32 v%d, 3, v0", aT)
    A("v_lshlrev_b32 v%d, 5, v%d", aT, aT)
    A("v_lshl_or_b32 v%d, v1, 7, v%d", aT, aT)
    A("v_bfe_u32 v%d, v0, 2, 2", aT + 1)
    A("v_lshl_or_b32 v%d, v%d, 3, v%d", aT, aT + 1, aT)
    A("v_add_u32 v%d, 0x%x, v%d", aT, L_Q, aT)
    A("v_cvt_pk_bf16_f32 v%d, v%d, v%d", aD, aD, aD + 1)
    A("v_cvt_pk_bf16_f32 v%d, v%d, v%d", aD + 1, aD + 2, aD + 3)
    A("ds_write_b64 v%d, %s", aT, vr(aD, 2))
    A("s_waitcnt lgkmcnt(0)")
    A("s_barrier")

    A("v_lshrrev_b32 v%d, 3, v0", aT)
    if exp == 2:
        A("s_movk_i32 s62, 128")
    A("v_mad_u32_u24 v%d, v%d, s62, v%d", aWq, aT, aSw)
    A("s_cmp_ge_u32 %s, %d", sR, 0 if wodef else 9)
    A("s_cbranch_scc1 L_role_b")
    A("s_mul_i32 s51, %s, %d", sHA, 256 * 1152)
    A("s_lshl_b32 s52, %s, %d", sR, 15 if exp == 2 else 7)
    A("s_add_u32 s51, s51, s52")
    A("s_add_u32 s36, s12, s51")
    A("s_addc_u32 s37, s13, 0")
    A("s_sub_u32 s38, %d, s52", 256 * 1152)
    A("s_mov_b32 s44, 0")
    A("s_mov_b32 s45, 0x%x", L_AUX)
    A("s_barrier")
    A("L_wo:")
    dma_rows("s[36:39]", aWq, 1152, 8, "s44", ffnflag, "s45")
    A("s_add_u32 s44, s44, %d", 8192 if exp == 2 else 64 * 1152)
    A("s_add_u32 s45, s45, 0x2000")
    A("s_cmp_lg_u32 s45, 0x%x", L_AUX + 0x8000)
    A("s_waitcnt vmcnt(0)")
    A("s_cbranch_scc1 L_wo")
    A("s_branch L_combine")

    A("L_role_b:")
    A("s_cmp_ge_u32 %s, 72", sF)
    A("s_cbranch_scc0 L_ffn")
    A("s_barrier")
    A("s_branch L_combine")

    A("L_ffn:")
    aG = 4
    A("s_mul_i32 s52, %s, %d", sF, 73728 if exp == 2 else 128)
    A("s_add_u32 s36, s16, s52")
    A("s_addc_u32 s37, s17, 0")
    A("s_sub_u32 s38, %d, s52", 576 * 9216)
    A("s_add_u32 s40, s18, s52")
    A("s_addc_u32 s41, s19, 0")
    A("s_mov_b32 s42, s38")
    A("s_mov_b32 s43, 0x20000")
    A("s_mul_i32 s52, %s, %d", sF, 64 * 1152)
    A("s_add_u32 s72, s20, s52")
    A("s_addc_u32 s73, s21, 0")
    A("s_mov_b32 s74, %d", 64 * 1152)
    A("s_mov_b32 s75, 0x20000")
    A("v_mul_u32_u24 v%d, %d, v%d", aG, 128 if exp == 2 else 9216, aT)
    A("v_add_u32 v%d, v%d, v%d", aG, aG, aSw)
    for c in range(4):
        A("v_add_u32 v%d, %d, v%d", aTr + c, L_AUX - L_STG, aTr + c)
    A("v_and_b32 v%d, 1, v0", aT)
    A("v_mul_u32_u24 v%d, 1152, v%d", aT, aT)
    A("v_lshl_add_u32 v%d, v1, 3, v%d", aT, aT)
    A("v_add_u32 v%d, 0x%x, v%d", aT + 6, L_XN, aT)
    for i in range(0, 32, 2):
        A("v_mov_b64 v[%d:%d], 0", aAc + i, aAc + i + 1)
    A("s_mov_b32 s44, 0")
    A("s_mov_b32 s45, 0x%x", L_AUX)
    A("s_add_u32 s46, s45, 0x2000")
    A("s_mov_b32 s47, 0")
    A("s_barrier")
    A("L_gu_issue:")
    dma_rows("s[36:39]", aG, 9216, 8, "s44", ffnflag, "s45")
    dma_rows("s[40:43]", aG, 9216, 8, "s44", ffnflag, "s46")
    A("s_add_u32 s44, s44, %d", 8192 if exp == 2 else 64 * 9216)
    A("s_xor_b32 s45, s45, 0x4000")
    A("s_xor_b32 s46, s46, 0x4000")
    A("s_cmp_eq_u32 s47, 0")
    A("s_cbranch_scc1 L_gu_next")
    A("L_gu_compute:")
    for st in range(4):
        A("ds_read_b64 %s, v%d offset:%d", vr(aB + 2 * st, 2), aT + 6, 32 * st)
    for w in range(2):
        acc = (aAc, aAu)[w]
        for kk in range(2):
            for c in range(4):
                trread(aA + 16 * kk + 4 * c, c, 8192 * w + 4096 * kk)
                trread(aA + 16 * kk + 4 * c + 2, c, 8192 * w + 4096 * kk + 2048)
        for kk in range(2):
            A("s_waitcnt lgkmcnt(%d)", 8 - 8 * kk)
            for c in range(4):
                A("v_mfma_f32_16x16x32_bf16 %s, %s, %s, %s", vr(acc + 4 * c, 4), vr(aA + 16 * kk + 4 * c, 4), vr(aB + 4 * kk, 4), vr(acc + 4 * c, 4))
    A("v_add_u32 v%d, 128, v%d", aT + 6, aT + 6)
    for c in range(4):
        A("v_xor_b32 v%d, 0x4000, v%d", aTr + c, aTr + c)
    A("L_gu_next:")
    A("s_add_u32 s47, s47, 1")
    A("s_cmp_eq_u32 s47, 10")
    A("s_cbranch_scc1 L_gu_done")
    A("s_cmp_lt_u32 s47, 9")
    A("s_waitcnt vmcnt(0)")
    A("s_cbranch_scc1 L_gu_issue")
    A("s_mov_b32 s44, 0")
    dma_rows("s[72:75]", aWq, 1152, 8, "s44", ffnflag, "s45")
    A("s_branch L_gu_compute")
    A("L_gu_done:")
    A("s_nop 3")
    for i in range(0, 16, 2):
        A("v_cvt_pk_bf16_f32 v%d, v%d, v%d", aT, aAc + i, aAc + i + 1)
        A("v_cvt_pk_bf16_f32 v%d, v%d, v%d", aT + 1, aAu + i, aAu + i + 1)
        A("v_lshlrev_b32 v%d, 16, v%d", aT + 2, aT)
        A("v_and_b32 v%d, %s, v%d", aT + 3, sHi, aT)
        A("v_lshlrev_b32 v%d, 16, v%d", aT + 4, aT + 1)
        A("v_and_b32 v%d, %s, v%d", aT + 5, sHi, aT + 1)
        A("v_max_f32 v%d, 0, v%d", aT + 2, aT + 2)
        A("v_max_f32 v%d, 0, v%d", aT + 3, aT + 3)
        A("v_pk_mul_f32 %s, %s, %s", vr(aT + 2, 2), vr(aT + 2, 2), vr(aT + 4, 2))
        A("v_cvt_pk_bf16_f32 v%d, v%d, v%d", aB + i // 2, aT + 2, aT + 3)
    A("s_mul_i32 s51, %s, 4608", sF)
    A("s_add_u32 s51, s51, 0x%x", WS_DP)
    A("v_bfe_u32 v%d, v0, 2, 1", aT)
    A("v_lshlrev_b32 v%d, 8, v%d", aT, aT)
    A("v_lshl_or_b32 v%d, v1, 6, v%d", aT, aT)
    A("v_and_b32 v%d, 3, v0", aT + 1)
    A("v_lshl_or_b32 v%d, v%d, 4, v%d", aT, aT + 1, aT)
    A("v_add_u32 v%d, s51, v%d", aT + 6, aT)
    A("s_mov_b32 s64, 0x0c0c0c0c")
    A("s_mov_b32 s65, 0x0c0c0c0c")
    A("s_mov_b32 s66, 0x30303030")
    A("s_mov_b32 s67, 0x30303030")
    A("s_mov_b32 s68, 0xc0c0c0c0")
    A("s_mov_b32 s69, 0xc0c0c0c0")
    A("s_mov_b32 s47, 0")
    A("L_dn:")
    A("s_add_u32 s47, s47, 1")
    A("s_cmp_eq_u32 s47, 9")
    A("s_waitcnt vmcnt(0)")
    A("s_cbranch_scc1 L_dn_compute")
    A("s_add_u32 s44, s44, %d", 8192 if exp == 2 else 128)
    A("s_xor_b32 s45, s45, 0x4000")
    dma_rows("s[72:75]", aWq, 1152, 8, "s44", ffnflag, "s45")
    A("L_dn_compute:")
    for kk in range(2):
        for c in range(4):
            trread(aA + 16 * kk + 4 * c, c, 4096 * kk)
            trread(aA + 16 * kk + 4 * c + 2, c, 4096 * kk + 2048)
    for kk in range(2):
        A("s_waitcnt lgkmcnt(%d)", 8 - 8 * kk)
        for c in range(4):
            A("v_mfma_f32_16x16x32_bf16 %s, %s, %s, %s", vr(aAc + 4 * c, 4), vr(aA + 16 * kk + 4 * c, 4), vr(aB + 4 * kk, 4),
              "0" if kk == 0 else vr(aAc + 4 * c, 4))
    for c in range(4):
        A("v_xor_b32 v%d, 0x4000, v%d", aTr + c, aTr + c)
    A("s_nop 4")
    for r in range(4):
        A("v_cndmask_b32 v%d, v%d, v%d, s[64:65]", aAu + r, aAc + r, aAc + 4 + r)
    for c in range(2, 4):
        for r in range(4):
            A("v_cndmask_b32 v%d, v%d, v%d, s[%d:%d]", aAu + r, aAu + r, aAc + 4 * c + r, 62 + 2 * c, 63 + 2 * c)
    put_tags(aAu, aFl)
    A("s_mov_b32 exec_lo, 0x00ff00ff")
    A("s_mov_b32 exec_hi, 0x00ff00ff")
    A("global_store_dwordx4 v%d, %s, s[26:27] %s", aT + 6, vr(aAu, 4), dpf)
    A("s_mov_b64 exec, -1")
    A("v_add_u32 v%d, 512, v%d", aT + 6, aT + 6)
    A("s_cmp_lg_u32 s47, 9")
    A("s_cbranch_scc1 L_dn")

    aXv, aGv, aOa, aSa = 10, 11, 12, 13
    A("v_lshrrev_b32 v%d, 2, v0", aT)
    A("v_mul_u32_u24 v%d, 4608, v%d", aT, aT)
    A("v_and_b32 v%d, 3, v0", aT + 1)
    A("v_lshl_or_b32 v%d, v%d, 4, v%d", aT, aT + 1, aT)
    A("s_lshl_b32 s51, %s, 6", sF)
    A("s_add_u32 s52, s51, 0x%x", WS_SP)
    A("v_add_u32 v%d, s52, v%d", aSa, aT)
    A("v_add_u32 v%d, %d, v%d", aSa + 1, 16 * 4608, aSa)
    A("s_add_u32 s52, s51, 0x%x", WS_DP)
    aDa = 20
    A("v_add_u32 v%d, s52, v%d", aDa, aT)
    for i in range(1, 5):
        A("v_add_u32 v%d, %d, v%d", aDa + i, 16 * 4608, aDa + i - 1)
    A("s_lshr_b32 s51, %s, 2", sF)
    A("s_lshl_b32 s51, s51, 6")
    A("s_and_b32 s52, %s, 3", sF)
    A("s_lshl3_add_u32 s51, s52, s51")
    A("v_and_b32 v%d, 1, v0", aT)
    A("v_mul_u32_u24 v%d, 1152, v%d", aT, aT)
    A("v_bfe_u32 v%d, v0, 1, 1", aT + 1)
    A("v_lshl_add_u32 v%d, v%d, 5, v%d", aT, aT + 1, aT)
    A("v_bfe_u32 v%d, v0, 4, 1", aT + 1)
    A("v_lshl_add_u32 v%d, v%d, 2, v%d", aT, aT + 1, aT)
    A("v_lshrrev_b32 v%d, 5, v0", aT + 1)
    A("v_lshl_add_u32 v%d, v%d, 1, v%d", aT, aT + 1, aT)
    A("v_add_u32 v%d, s51, v%d", aOa, aT)
    A("global_load_ushort v%d, v%d, s[4:5]", aXv, aOa)

    def red_rows():
        A("s_nop 1")
        A("v_permlane32_swap_b32 v%d, v%d", aD, aD + 1)
        A("v_permlane32_swap_b32 v%d, v%d", aD + 2, aD + 3)
        A("v_add_f32 v%d, v%d, v%d", aD, aD, aD + 1)
        A("v_add_f32 v%d, v%d, v%d", aD + 2, aD + 2, aD + 3)
        A("s_nop 1")
        A("v_permlane16_swap_b32 v%d, v%d", aD, aD + 2)
        A("v_add_f32 v%d, v%d, v%d", aD, aD, aD + 2)
        A("s_nop 1")
        A("v_add_f32_dpp v%d, v%d, v%d row_ror:8 %s", aD, aD, aD, dp)
        A("s_nop 1")
        A("v_add_f32_dpp v%d, v%d, v%d row_ror:4 %s", aD, aD, aD, dp)
        A("v_cvt_pk_bf16_f32 v%d, v%d, v%d", aD, aD, aD)
        A("v_lshlrev_b32 v%d, 16, v%d", aD, aD)

    aCa, aXf, aRw = 26, 28, aA

    def sp_poll():
        for i in range(2):
            A("global_load_dwordx4 %s, v%d, s[26:27] sc1", vr(aRw + 4 * i, 4), aSa + i)

    A("L_combine:")
    stamp(7)
    A("v_and_b32 v%d, 1, v1", aCa)
    A("v_lshlrev_b32 v%d, 3, v%d", aCa + 1, aCa)
    A("v_lshlrev_b32 v%d, 9, v%d", aCa, aCa)
    A("v_lshl_or_b32 v%d, v2, 5, v%d", aCa, aCa)
    A("v_lshrrev_b32 v%d, 5, v0", aT)
    A("v_lshl_or_b32 v%d, v%d, 4, v%d", aCa, aT, aCa)
    if dry:
        A("; first pass runs during the stream with every global access masked off")
        A("s_mov_b32 s58, 0")
        A("s_mov_b32 s59, 1")
        A("s_branch L_cb")
        A("L_cb_real:")
        A("s_mov_b64 exec, -1")
        A("s_waitcnt vmcnt(0)")
    A("s_mov_b32 s58, -1")
    A("s_mov_b32 s59, %d", SPIN)
    A("s_barrier")
    A("L_cb:")
    for w in range(4):
        A("ds_read_b64 %s, v%d offset:%d", vr(aB + 2 * w, 2), aCa + 1, 16384 * w + 1024)
    for w in range(4):
        A("ds_read_b128 %s, v%d offset:%d", vr(aA + 4 * w, 4), aCa, 16384 * w)
    A("s_waitcnt lgkmcnt(4)")
    aR = aAc
    A("v_max3_f32 v%d, v%d, v%d, v%d", aR + 2, aB, aB + 2, aB + 4)
    A("v_max_f32 v%d, v%d, v%d", aR + 2, aR + 2, aB + 6)
    for w in range(4):
        A("v_sub_f32 v%d, v%d, v%d", aB + 2 * w, aB + 2 * w, aR + 2)
    for w in range(4):
        A("v_exp_f32 v%d, v%d", aB + 2 * w, aB + 2 * w)
    A("v_mul_f32 v%d, v%d, v%d", aR + 3, aB, aB + 1)
    for w in range(1, 4):
        A("v_fmac_f32 v%d, v%d, v%d", aR + 3, aB + 2 * w, aB + 2 * w + 1)
    A("s_waitcnt lgkmcnt(0)")
    for h in range(2):
        A("v_pk_mul_f32 %s, %s, %s op_sel_hi:[1,0]", vr(aA + 2 * h, 2), vr(aA + 2 * h, 2), vr(aB, 2))
    for w in range(1, 4):
        for h in range(2):
            A("v_pk_fma_f32 %s, %s, %s, %s op_sel_hi:[1,0,1]", vr(aA + 2 * h, 2), vr(aA + 4 * w + 2 * h, 2), vr(aB + 2 * w, 2), vr(aA + 2 * h, 2))
    A("v_cvt_pk_bf16_f32 v%d, v%d, v%d", aR, aA, aA + 1)
    A("v_cvt_pk_bf16_f32 v%d, v%d, v%d", aR + 1, aA + 2, aA + 3)
    for r in (2, 3, 0, 1):
        A("v_min_u32 v%d, -2, v%d", aR + r, aR + r)
    A("s_nop 1")
    A("v_permlane32_swap_b32 v%d, v%d", aR, aR + 2)
    A("v_permlane32_swap_b32 v%d, v%d", aR + 1, aR + 3)
    A("s_mov_b32 exec_lo, s58")
    A("s_and_b32 exec_hi, s58, 0x00010001")
    A("global_store_dwordx4 v%d, %s, s[26:27] sc1", aPo, vr(aR, 4))
    A("s_mov_b64 exec, -1")
    stamp(8)
    A("s_cmp_ge_u32 %s, 72", sF)
    A("s_cbranch_scc1 L_notred")
    A("s_mov_b32 s60, s59")
    A("L_dp_poll:")
    for r in range(4):
        A("v_mov_b32 v%d, s%d", aD + 16 + r, sTag + r)
    A("s_mov_b32 exec_lo, s58")
    A("s_mov_b32 exec_hi, s58")
    for i in range(4):
        A("global_load_dwordx4 %s, v%d, s[26:27] %s", vr(aD + 4 * i, 4), aDa + i, dlf)
    A("s_mov_b32 exec_hi, 0")
    A("global_load_dwordx4 %s, v%d, s[26:27] %s", vr(aD + 16, 4), aDa + 4, dlf)
    A("s_mov_b64 exec, -1")
    A("s_sub_u32 s60, s60, 1")
    A("s_cmp_eq_u32 s60, 0")
    A("s_waitcnt vmcnt(0)")
    check_tags(aD, 20, aT)
    A("s_cbranch_scc1 L_dp_ok")
    A("s_cbranch_vccnz L_dp_poll")
    A("L_dp_ok:")
    A("s_mov_b32 exec_lo, s58")
    A("s_mov_b32 exec_hi, s58")
    sp_poll()
    A("s_mov_b64 exec, -1")
    for i in range(1, 5):
        for h in range(2):
            A("v_pk_add_f32 %s, %s, %s", vr(aD + 2 * h, 2), vr(aD + 2 * h, 2), vr(aD + 4 * i + 2 * h, 2))
    red_rows()
    A("v_mul_f32 v%d, 0xbfb8aa3b, v%d", aT, aD)
    A("v_exp_f32 v%d, v%d", aT, aT)
    A("v_lshlrev_b32 v%d, 16, v%d", aXf, aXv)
    A("v_add_f32 v%d, 1.0, v%d", aT, aT)
    A("v_rcp_f32 v%d, v%d", aT, aT)
    A("s_mov_b32 s60, s59")
    A("v_mul_f32 v%d, v%d, v%d", aT, aT, aD)
    A("v_cvt_pk_bf16_f32 v%d, v%d, v%d", aT, aT, aT)
    A("v_lshlrev_b32 v%d, 16, v%d", aGv, aT)
    if depth == 2:
        sp_poll()
    A("L_sp_poll:")
    A("s_waitcnt vmcnt(%d)", 2 * (depth - 1))
    check_tags(aD, 8, aT, aRw)
    A("s_cbranch_vccz L_sp_ok")
    A("s_and_b32 exec_lo, vcc_lo, s58")
    A("s_and_b32 exec_hi, vcc_hi, s58")
    sp_poll()
    A("s_mov_b64 exec, -1")
    A("s_sub_u32 s60, s60, 1")
    A("s_cmp_lg_u32 s60, 0")
    A("s_cbranch_scc1 L_sp_poll")
    A("L_sp_ok:")
    for h in range(2):
        A("v_pk_add_f32 %s, %s, %s", vr(aD + 2 * h, 2), vr(aD + 2 * h, 2), vr(aD + 4 + 2 * h, 2))
    red_rows()
    A("v_mul_f32 v%d, v%d, v%d", aD, aD, aGv)
    A("v_cvt_pk_bf16_f32 v%d, v%d, v%d", aD, aD, aD)
    A("v_lshlrev_b32 v%d, 16, v%d", aD, aD)
    A("v_add_f32 v%d, v%d, v%d", aD, aD, aXf)
    A("v_cvt_pk_bf16_f32 v%d, v%d, v%d", aD, aD, aD)
    A("s_and_b32 exec_lo, s58, 0x000f000f")
    A("s_and_b32 exec_hi, s58, 0x000f000f")
    A("global_store_short v%d, v%d, s[22:23]", aOa, aD)
    if dry:
        A("s_cbranch_scc0 L_cb_real")
    A("s_cmp_lg_u32 %s, 0", sF)
    A("s_cbranch_scc1 L_aux_end")
    A("s_mov_b64 exec, 1")
    A("v_mov_b32 v%d, 0x%x", aT, WS_EP)
    A("v_mov_b32 v%d, %s", aT + 1, sE)
    A("global_store_dword v%d, v%d, s[26:27] sc1", aT, aT + 1)
    A("s_branch L_aux_end")
    A("L_notred:")
    if dry:
        A("s_cmp_eq_u32 s58, 0")
        A("s_cbranch_scc1 L_cb_real")
    if wodef:
        A("s_barrier")
    A("L_aux_end:")
    if stamps:
        A("s_waitcnt vmcnt(0)")
        stamp(13)
        A("s_mov_b64 exec, -1")
        dump_stamps(0, 1, 100)
        dump_stamps(5, 14, 100)
    A("L_end:")
    A("s_endpgm")

    A('.section .rodata,"a"\n.p2align 6\n.amdhsa_kernel %s' % KNAME)
    A("  .amdhsa_next_free_vgpr 168\n  .amdhsa_next_free_sgpr 102\n  .amdhsa_accum_offset 168")
    A("  .amdhsa_group_segment_fixed_size 0\n  .amdhsa_kernarg_size 96\n  .amdhsa_user_sgpr_count 2")
    A("  .amdhsa_user_sgpr_kernarg_segment_ptr 1\n  .amdhsa_system_sgpr_workgroup_id_x 1\n.end_amdhsa_kernel")
    return "\n".join(A.L) + "\n"


if __name__ == "__main__":
    for spec in sys.argv[1:]:
        kw = {}
        out = None
        for kv in spec.split(","):
            k, v = kv.split("=")
            if k == "o":
                out = v
                continue
            kw[k] = int(v) if v.lstrip("-").isdigit() else v.replace("+", " ").replace("none", "")
        name = out or "k_" + spec.replace("=", "").replace(",", "_").replace("+", "") + ".s"
        open(name, "w").write(gen(**kw))
        print(name)
```

```python
import re
import sys

KNAME = "recurrent_scan__gqa_block_cached__glu_gated_reglu__decode_kernel"

HEADER = """; Kernarg layout for this problem (96 bytes, ptrs only, base s[0:1]):
"""

WS_QP = 0x00000
WS_PO = 0x20000
WS_PS = 0x48000
WS_SP = 0x50000
WS_DP = 0x80000
WS_CT = 0xF0000
WS_EP = 0x44000
WS_ST = 0x20000000

L_AUX = 0x10000
L_STG = 0x20000
L_XN = L_STG + 18432
L_Q = L_XN + 2304
L_END = L_Q + 512

SPIN = 20000


class Asm:
    def __init__(self):
        self.L = []
        self.lg = 0

    def __call__(self, s, *a):
        s = s % a if a else s
        if s.startswith("ds_"):
            if self.lg >= 15:
                self.L.append("s_waitcnt lgkmcnt(14)")
                self.lg = 14
            self.lg += 1
        m = re.search(r"lgkmcnt\((\d+)\)", s)
        if m:
            self.lg = min(self.lg, int(m.group(1)))
        self.L.append(s)

    def nop(self, n):
        self.L.append("s_nop %d" % (n - 1))


def vr(b, n=1):
    return "v%d" % b if n == 1 else "v[%d:%d]" % (b, b + n - 1)


def gen(ns=76, stamps=0, pre=0, wqflag="nt", ffnflag="nt", mimic=1, b0=1, bal=2, clr=0, fillw=0, exp=0, mix=1, ahead=0, dplate=1, cs=256, aflag="sc0 sc1", wodef=1, dry=0, depth=1, podma=1, psl=1, xloc=1, dpf="sc1", clf="sc1", qpf="sc1", dlf="sc1", w3=1, es=0, ed=0, rot=1, bits="014d", ord="", early=1, nb=34, skip="3.8.13", thr=0, thd=0, fsw=1):
    A = Asm()
    A(HEADER.rstrip())
    A("; @launch grid=(256,1,1) block=(320,1,1) lds=%d" % L_END)
    A('.amdgcn_target "amdgcn-amd-amdhsa--gfx950"')
    A(".text\n.globl %s\n.p2align 8\n.type %s,@function\n%s:" % (KNAME, KNAME, KNAME))

    sX, sG, sB, sH, sU, sR = "s28", "s29", "s30", "s31", "s32", "s33"
    sF, sHA, sLn = "s61", "s71", "s57"

    def sreg(k):
        return 80 + 2 * (k if k < 5 else k - 4)

    def stamp(k):
        if stamps:
            A("s_memrealtime s[%d:%d]", sreg(k), sreg(k) + 1)
            if k:
                A("s_waitcnt lgkmcnt(0)")

    def dump_stamps(lo, hi, vt):
        if not stamps:
            return
        A("s_waitcnt lgkmcnt(0)")
        A("s_mul_i32 s60, s2, 112")
        A("s_add_u32 s60, s60, 0x%x", WS_ST)
        A("v_mov_b32 v%d, s60", vt)
        A("s_mov_b64 exec, 1")
        for k in range(lo, hi):
            A("v_mov_b32 v%d, s%d", vt + 2, sreg(k))
            A("v_mov_b32 v%d, s%d", vt + 3, sreg(k) + 1)
            A("global_store_dwordx2 v%d, v[%d:%d], s[26:27] offset:%d", vt, vt + 2, vt + 3, 8 * k)
            A("s_nop 1")
        A("s_mov_b64 exec, -1")

    sE, sTag = "s70", 76

    def make_tags():
        A("; hand-off tag bytes of this launch: bytes of the entry epoch word plus 1,2,3,4")
        A("s_and_b32 s51, %s, 0x80808080", sE)
        A("s_and_b32 %s, %s, 0x7f7f7f7f", sE, sE)
        A("s_add_u32 %s, %s, 0x04030201", sE, sE)
        A("s_xor_b32 %s, %s, s51", sE, sE)
        for r in range(4):
            A("s_bfe_u32 s%d, %s, 0x%x", sTag + r, sE, (8 << 16) | (8 * r))

    def put_tags(v, vmask):
        for r in range(4):
            A("v_and_or_b32 v%d, v%d, v%d, s%d", v + r, v + r, vmask, sTag + r)

    def check_tags(v, n, vt, src=None):
        for i in range(n):
            A("v_xor_b32 v%d, s%d, v%d", v + i, sTag + (i & 3), (v if src is None else src) + i)
        A("v_or_b32 v%d, v%d, v%d", vt, v, v + 1)
        for i in range(2, n, 2):
            A("v_or3_b32 v%d, v%d, v%d, v%d", vt, vt, v + i, v + i + 1)
        A("v_and_b32 v%d, 0xff, v%d", vt, vt)
        A("v_cmp_ne_u32 vcc, 0, v%d", vt)

    def dma_rows(srd, voff, pitch, n, soff0, flag, m0base, cap=0):
        if exp == 1 and pitch != 8192:
            return
        if exp == 2 and pitch != 8192:
            pitch = 128
        for i in range(n):
            k = i & 3
            if k == 0 and (i > 0 or m0base is not None):
                if isinstance(m0base, str):
                    A("s_add_u32 m0, %s, %d", m0base, 1024 * i)
                else:
                    A("s_add_u32 m0, m0, 4096") if i > 0 else A("s_mov_b32 m0, 0x%x", m0base)
            so = i * 8 * pitch - k * 1024
            if isinstance(soff0, str):
                A("s_add_u32 s53, %s, %d", soff0, so)
            else:
                A("s_mov_b32 s53, %d", soff0 + so)
            if cap:
                A("s_waitcnt vmcnt(%d)", cap - 1)
            A("buffer_load_dwordx4 v%d, %s, s53 offen offset:%d %s lds", voff, srd, 1024 * k, flag)

    A("s_cmp_ge_u32 s2, 256")
    A("s_cbranch_scc1 L_end")
    stamp(0)
    A("s_load_dwordx16 s[4:19], s[0:1], 0")
    A("s_load_dwordx8 s[20:27], s[0:1], 64")
    if pre:
        A("; pull the kernel's own code lines into L2 ahead of instruction fetch")
        A("s_getpc_b64 s[52:53]")
        A("L_pc:")
        A("v_lshlrev_b32 v1, 6, v0")
        A("v_min_u32 v1, L_end-L_pc, v1")
        A("global_load_dword v127, v1, s[52:53]")
    A("v_lshrrev_b32 v1, 6, v0")
    A("v_and_b32 v0, 63, v0")
    A("v_readfirstlane_b32 s3, v1")
    A("s_and_b32 %s, s2, 7", sX)
    A("s_lshr_b32 %s, s2, 3", sG)
    if mix:
        A("s_and_b32 s51, s2, 3")
        A("s_lshl3_add_u32 s51, s51, %s", sX)
        A("s_xor_b32 %s, %s, s51", sG, sG)
    A("s_lshr_b32 %s, %s, 4", sB, sG)
    A("s_and_b32 %s, %s, 15", sH, sG)
    A("s_lshl3_add_u32 %s, %s, %s", sU, sB, sX)
    if bal == 2:
        A("; side jobs: groups 0-7 take three FFN units, the others two FFN units and six wo slices")
        A("s_add_u32 s51, %s, %s", sX, sG)
        A("s_and_b32 s51, s51, 7")
        if xloc:
            A("s_lshr_b32 %s, %s, 3", sR, sG)
            A("s_mul_i32 %s, %s, 6", sR, sR)
            A("s_add_u32 %s, %s, s51", sR, sR)
            A("s_sub_u32 %s, %s, 8", sR, sR)
            A("s_and_b32 %s, %s, 1", sHA, sR)
            A("s_lshl1_add_u32 %s, %s, %s", sHA, sX, sHA)
            A("s_lshr_b32 %s, %s, 1", sR, sR)
        else:
            A("s_mul_i32 %s, %s, 6", sR, sG)
            A("s_add_u32 %s, %s, s51", sR, sR)
            A("s_sub_u32 %s, %s, 50", sR, sR)
            A("s_and_b32 %s, %s, 15", sHA, sR)
            A("s_lshr_b32 %s, %s, 4", sR, sR)
        A("s_cmp_lt_u32 %s, 8", sG)
        A("s_cselect_b32 s64, 3, 2")
        A("s_cselect_b32 s65, 48, -16")
        A("s_cselect_b32 %s, 15, %s", sR, sR)
        A("s_mul_i32 %s, %s, s64", sF, sG)
        A("s_add_u32 %s, %s, s65", sF, sF)
        A("s_add_u32 %s, %s, s51", sF, sF)
        if fsw:
            A("; units 51, 59, 67 trade places with 7, 15, 23")
            A("s_cmp_lt_u32 %s, 8", sG)
            A("s_cselect_b32 s65, -44, 44")
            A("s_cselect_b32 s60, 44, 0")
            A("s_sub_u32 s60, %s, s60", sF)
            A("s_mov_b64 s[58:59], 0x808080")
            A("s_bitcmp1_b64 s[58:59], s60")
            A("s_cselect_b32 s65, s65, 0")
            A("s_add_u32 %s, %s, s65", sF, sF)
        A("s_cmp_lt_u32 s51, s64")
        A("s_cselect_b32 %s, %s, 72", sF, sF)
        A("s_cselect_b32 %s, 15, %s", sR, sR)
    else:
        A("s_add_u32 %s, %s, %s", sR, sX, sH)
        A("s_and_b32 %s, %s, 7", sR, sR)
        A("s_lshl1_add_u32 %s, %s, %s", sR, sR, sB)
        A("s_mov_b32 %s, %s", sHA, sH)
        A("s_sub_u32 %s, %s, 9", sF, sR)
        A("s_lshl4_add_u32 %s, %s, %s", sF, sF, sH)
    A("v_lshrrev_b32 v1, 4, v0")
    A("v_and_b32 v2, 15, v0")
    A("s_cmp_eq_u32 s3, 4")
    A("s_cbranch_scc1 L_aux")

    vKd, vVd, vKr, vVr = 4, 8, 10, 14
    vQ, vK, vV = 24, 40, 56
    vS, vT = 72, 76
    vO = 84
    vM, vMc, vL, vCl, vCa, vOne = 116, 117, 118, 119, 120, 121
    vP = 122
    sOff, sK, sMask, sM0, sIt, sLast, sXor = "s44", "s45", "s46", "s47", "s48", "s49", "s50"
    sScale, sLog2e, sHi = "s54", "s55", "s56"
    sNs, sRw, sRd = "s34", "s35", "s68"
    pool = 128 + 48 * nb + 24
    step = 24 if w3 else 32

    A("v_xor_b32 v3, v2, v1")
    A("v_lshlrev_b32 v3, 4, v3")
    A("v_lshl_or_b32 v%d, v1, 8, v3", vKd)
    for j in range(1, 4):
        A("v_xor_b32 v%d, %d, v%d", vKd + j, 64 * j, vKd)
    A("v_lshlrev_b32 v22, 1, v1")
    A("v_xor_b32 v22, v22, v2")
    A("v_lshlrev_b32 v22, 4, v22")
    A("v_lshl_or_b32 v%d, v1, 8, v22", vVd)
    A("v_xor_b32 v%d, 0x80, v%d", vVd + 1, vVd)
    vKg, vVg = 136, 140
    bl = [int(c, 16) for c in bits]
    order = [int(c, 16) for c in ord]
    order += [p for p in range(15) if p not in bl and p not in order]
    A("; an item is 16 keys: key-index bits %d,%d come from the lane quarter, bits %d,%d from the load index", *bl)
    A("v_and_b32 v22, 1, v1")
    A("v_lshrrev_b32 v23, 1, v1")
    A("v_mul_u32_u24 v22, 0x%x, v22", (256 << bl[0]) - 256)
    A("v_mul_u32_u24 v23, 0x%x, v23", (256 << bl[1]) - 512)
    A("v_add_u32 v22, v22, v23")
    for j in range(4):
        A("s_mov_b32 s51, 0x%x", (j & 1) * (256 << bl[2]) + (j >> 1) * (256 << bl[3]) - 1024 * j)
        A("v_add3_u32 v%d, s51, v22, v%d", vKg + j, vKd + j)
        A("v_add3_u32 v%d, s51, v22, v%d", vVg + j, vVd + (j & 1))
    sId, sOf2 = "s67", "s66"
    sSkip, sAlt, sPool = "s98", "s100", "s101"
    sSl = "s69"
    if rot:
        A("s_lshr_b32 %s, %s, %d", sSl, sG, rot - 1)
        A("s_add_u32 %s, %s, %s", sSl, sX, sSl)
        A("s_and_b32 %s, %s, 7", sSl, sSl)
    else:
        A("s_mov_b32 %s, %s", sSl, sX)

    def item_off(nbits=11):
        i = 0
        while i < nbits:
            n = 1
            while i + n < 11 and order[i + n] == order[i] + n:
                n += 1
            d = sOff if i == 0 else "s52"
            A("s_bfe_u32 %s, %s, 0x%x", d, sId, (n << 16) | i)
            A("s_lshl_b32 %s, %s, %d", d, d, order[i] + 8)
            if i:
                A("s_or_b32 %s, %s, s52", sOff, sOff)
            i += n

    A("s_lshl_b32 s51, %s, 23", sG)
    A("s_lshl2_add_u32 %s, %s, s3", sId, sSl)
    item_off(5)
    A("s_lshl_b32 %s, s3, 14", sM0)
    A("s_mov_b32 s38, 0x800000")
    A("s_mov_b32 s39, 0x20000")
    A("s_mov_b32 s42, 0x800000")
    A("s_mov_b32 s43, 0x20000")
    A("s_waitcnt lgkmcnt(0)")
    A("s_add_u32 s36, s6, s51")
    A("s_addc_u32 s37, s7, 0")
    A("s_add_u32 s40, s8, s51")
    A("s_addc_u32 s41, s9, 0")
    A("s_load_dword %s, s[26:27], 0x%x", sE, WS_EP)

    def issue_item(filler):
        for j in range(4):
            A("buffer_load_dwordx4 v%d, s[36:39], %s offen offset:%d nt lds", vKg + j, sOff, 1024 * j)
        A("s_add_u32 m0, %s, 4096", sM0)
        A(filler)
        for j in range(4):
            A("buffer_load_dwordx4 v%d, s[40:43], %s offen offset:%d nt lds", vVg + j, sOff, 1024 * j)

    A("s_mov_b32 %s, 0", sK)
    A("s_mov_b32 m0, %s", sM0)
    if b0:
        A("s_barrier")
    A("L_fill:")
    issue_item("s_add_u32 %s, %s, 1" % (sK, sK))
    A("s_add_u32 %s, %s, 32", sId, sId)
    item_off(8)
    A("s_bitcmp1_b32 %s, 0", sK)
    A("s_cselect_b32 s51, 0, 0x10000")
    A("s_bitset1_b32 s51, 13")
    A("s_xor_b32 %s, %s, s51", sM0, sM0)
    A("s_mov_b32 m0, %s", sM0)
    A("s_cmp_eq_u32 %s, 4", sK)
    A("s_cbranch_scc1 L_filled")
    A("s_waitcnt vmcnt(%d)", fillw)
    A("s_branch L_fill")
    A("L_filled:")
    A("v_lshl_or_b32 v%d, v2, 8, v3", vKr)
    A("v_add_u32 v%d, %s, v%d", vKr, sM0, vKr)
    for m in range(1, 4):
        A("v_xor_b32 v%d, %d, v%d", vKr + m, 64 * m, vKr)
    A("v_lshrrev_b32 v22, 2, v0")
    A("v_and_b32 v23, 7, v22")
    A("v_lshlrev_b32 v23, 5, v23")
    A("v_lshl_or_b32 v23, v22, 8, v23")
    A("v_and_b32 v22, 3, v0")
    A("v_lshl_or_b32 v23, v22, 3, v23")
    A("s_add_u32 s51, %s, 4096", sM0)
    A("v_add_u32 v%d, s51, v23", vVr)
    for t in range(1, 8):
        A("v_xor_b32 v%d, %d, v%d", vVr + t, 32 * t, vVr)
    for i in range(0, 32, 2):
        A("v_mov_b64 v[%d:%d], 0", vO + i, vO + i + 1)
    A("v_mov_b32 v%d, 0xff800000", vM)
    A("v_mov_b32 v%d, 0xff800000", vMc)
    A("v_mov_b32 v%d, 0", vL)
    A("v_mov_b32 v%d, 1", vOne)
    A("s_mul_i32 s51, %s, %d", sG, cs)
    A("s_add_u32 s51, s51, 0x%x", WS_CT)
    A("v_mov_b32 v%d, s51", vCa)
    A("v_and_b32 v22, 1, v0")
    A("v_lshlrev_b32 v22, 8, v22")
    A("v_lshl_or_b32 v22, v1, 4, v22")
    A("v_add_u32 v22, 0x%x, v22", L_Q)
    vWa, vPo, vPa, vSa, vWo, vMk = 124, 128, 129, 130, 131, 132
    A("s_lshr_b32 s58, s3, 1")
    A("s_lshl1_add_u32 s59, %s, s58", sHA)
    A("s_lshl_b32 s51, s59, 12")
    A("s_add_u32 s51, s51, 0x%x", WS_PO)
    if podma:
        A("s_add_u32 s72, s26, s51")
        A("s_addc_u32 s73, s27, 0")
        A("s_mov_b32 s74, 4096")
        A("s_mov_b32 s75, 0x20000")
    else:
        A("v_lshlrev_b32 v%d, 4, v1", vPo)
        A("v_lshl_or_b32 v%d, v2, 8, v%d", vPo, vPo)
        A("v_add_u32 v%d, s51, v%d", vPo, vPo)
    if psl:
        A("s_lshl_b32 s51, %s, 7", sHA)
        A("s_add_u32 s51, s51, s58")
        A("s_lshl4_add_u32 s51, s51, 0x%x", WS_PS)
        A("v_lshl_add_u32 v%d, v2, 7, s51", vPa)
    else:
        A("s_lshl_b32 s51, s59, 8")
        A("s_add_u32 s51, s51, 0x%x", WS_PS)
        A("v_lshl_add_u32 v%d, v2, 4, s51", vPa)
    A("v_lshrrev_b32 v%d, 2, v2", vWa)
    A("v_lshl_or_b32 v%d, v1, 3, v%d", vWa, vWa)
    A("v_lshlrev_b32 v%d, 7, v%d", vWa, vWa)
    A("v_and_b32 v23, 3, v0")
    A("v_lshl_or_b32 v%d, v23, 3, v%d", vWa, vWa)
    A("v_lshrrev_b32 v23, 3, v2")
    A("v_lshl_or_b32 v%d, v23, 5, v%d", vWa, vWa)
    A("s_lshl_b32 s51, s58, 14")
    A("s_add_u32 s51, s51, 0x%x", L_AUX)
    A("s_and_b32 s58, s3, 1")
    A("s_lshl_b32 s52, s58, 6")
    A("v_xor_b32 v%d, s52, v%d", vWa, vWa)
    A("v_add_u32 v%d, s51, v%d", vWa, vWa)
    A("v_xor_b32 v%d, 0x240, v%d", vWa + 1, vWa)
    A("v_xor_b32 v%d, 0x20, v%d", vWa + 2, vWa)
    A("v_xor_b32 v%d, 0x260, v%d", vWa + 3, vWa)
    A("s_mul_i32 s51, s59, 4608")
    A("s_lshl1_add_u32 s52, %s, s58", sR)
    A("s_lshl_b32 s52, s52, 8")
    A("s_add_u32 s51, s51, s52")
    A("s_add_u32 s51, s51, 0x%x", WS_SP)
    A("v_lshlrev_b32 v23, 6, v1")
    A("v_lshl_or_b32 v23, v2, 4, v23")
    A("v_add_u32 v%d, s51, v23", vSa)
    A("v_mov_b32 v%d, 0xffffff00", vMk)
    A("v_lshrrev_b32 v23, 3, v0")
    A("v_and_b32 v%d, 6, v23", vWo)
    A("v_xor_b32 v%d, v0, v%d", vWo, vWo)
    A("v_and_b32 v%d, 7, v%d", vWo, vWo)
    A("v_mul_u32_u24 v23, 1152, v23")
    A("v_lshl_add_u32 v%d, v%d, 4, v23", vWo, vWo)
    A("s_mov_b32 s62, 0xcccccccc")
    A("s_mov_b32 s63, 0xcccccccc")
    A("s_mov_b32 %s, 0xfffffff2", sMask)
    sk = [int(t) for t in skip.split(".") if t]
    assert rot == 1 or not sk
    A("; workgroups running an FFN unit sit out %d static rounds; s64 = FFN workgroups of this group", len(sk))
    A("s_mul_i32 s51, s64, 6")
    A("s_cmp_lt_u32 %s, 72", sF)
    A("s_cselect_b32 %s, %d, %d", sNs, nb - len(sk), nb)
    A("s_cselect_b32 %s, 96, 48", sAlt)
    A("s_cselect_b32 %s, 0x%x, 0", sSkip, sum(1 << (k - j) for j, k in enumerate(sk)) ^ sum(1 << k for k in sk))
    A("s_xor_b32 %s, %s, 0x%x", sSkip, sSkip, sum(1 << k for k in sk))
    A("s_mov_b32 s99, 0")
    A("s_sub_u32 %s, %s, s51", sAlt, sAlt)
    A("s_mul_i32 s51, s51, %d", len(sk))
    A("s_sub_u32 %s, %d, s51", sPool, pool + 1)
    A("s_mov_b32 %s, %s", sRw, sR)
    A("s_mov_b32 %s, 15", sRd)
    A("s_mul_i32 %s, %s, 3", sSl, sSl)
    A("s_add_u32 %s, %s, s3", sSl, sSl)
    A("s_lshl1_add_u32 %s, %s, 128", sId, sSl)
    item_off(8)
    A("s_add_u32 %s, %s, 0x%x", sOf2, sOff, 256 << order[0])
    A("v_mov_b32 v%d, 0x10000", vCl)
    A("s_mov_b32 %s, 0", sK)
    A("s_cmp_lg_u32 s3, 3")
    A("s_cbranch_scc1 L_w3set")
    A("s_mov_b32 %s, 0xfffffff8", sMask)
    A("s_mov_b32 %s, %s", sRd, sR)
    A("s_mov_b32 %s, 15", sRw)
    A("s_mov_b32 %s, 1", sK)
    A("L_w3set:")
    A("s_mov_b32 %s, 0x140000", sIt)
    A("s_mov_b32 %s, 0", sLast)
    A("s_mov_b32 %s, 0", sLn)
    A("s_mov_b32 %s, 0x3db504f3", sScale)
    A("s_mov_b32 %s, 0x3fb8aa3b", sLog2e)
    A("s_mov_b32 %s, 0xffff0000", sHi)
    A("s_waitcnt lgkmcnt(0)")
    make_tags()
    stamp(1)
    A("s_barrier")
    stamp(2)
    for m in range(4):
        A("ds_read_b128 %s, v22 offset:%d", vr(vQ + 4 * m, 4), 64 * m)
    A("s_waitcnt vmcnt(24) lgkmcnt(2)")

    def issue_pair(vg, srd, filler):
        for j in range(4):
            A("buffer_load_dwordx4 v%d, %s, %s offen offset:%d nt lds", vg + j, srd, sOff, 1024 * j)
        A("s_add_u32 m0, m0, 4096")
        A(filler)
        for j in range(4):
            A("buffer_load_dwordx4 v%d, %s, %s offen offset:%d nt lds", vg + j, srd, sOf2, 1024 * j)

    def score_round(v):
        A("v_cvt_pk_bf16_f32 v%d, v%d, v%d", vT, v, v + 1)
        A("v_cvt_pk_bf16_f32 v%d, v%d, v%d", vT + 1, v + 2, v + 3)
        A("v_lshlrev_b32 v%d, 16, v%d", v, vT)
        A("v_and_b32 v%d, %s, v%d", v + 1, sHi, vT)
        A("v_lshlrev_b32 v%d, 16, v%d", v + 2, vT + 1)
        A("v_and_b32 v%d, %s, v%d", v + 3, sHi, vT + 1)

    def score_scale(v):
        if mimic:
            score_round(v)
        for r in range(4):
            A("v_mul_f32 v%d, %s, v%d", v + r, sScale, v + r)
        if mimic:
            score_round(v)

    A("L_loop:")
    A("s_bitcmp1_b32 %s, 0", sMask)
    A("s_cbranch_scc0 L_compute")
    A("s_mov_b32 m0, %s", sM0)
    A("s_cmp_lg_u32 %s, 0", sK)
    A("s_cbranch_scc1 L_dyn")
    A("s_waitcnt vmcnt(0)")
    issue_pair(vKg, "s[36:39]", "s_xor_b32 %s, %s, 0x2000" % (sM0, sM0))
    A("L_compute:")
    for m in range(4):
        A("ds_read_b128 %s, v%d", vr(vK + 4 * m, 4), vKr + m)
    for t in range(8):
        A("ds_read_b64_tr_b16 %s, v%d", vr(vV + 2 * t, 2), vVr + t)
    A("s_ashr_i32 %s, %s, 1", sMask, sMask)
    A("s_lshr_b32 %s, %s, 1", sIt, sIt)
    A("s_and_b32 %s, %s, 0x10000", sXor, sIt)
    A("s_bitset1_b32 %s, 13", sXor)
    for m in range(4):
        A("s_waitcnt lgkmcnt(%d)", 11 - m)
        A("v_mfma_f32_16x16x32_bf16 %s, %s, %s, %s", vr(vS, 4), vr(vK + 4 * m, 4), vr(vQ + 4 * m, 4),
          "0" if m == 0 else vr(vS, 4))
    for i in range(12):
        A("v_xor_b32 v%d, %s, v%d", vKr + i, sXor, vKr + i)
    score_scale(vS)
    A("v_max3_f32 v%d, v%d, v%d, v%d", vT, vS, vS + 1, vS + 2)
    A("v_max_f32 v%d, v%d, v%d", vT, vT, vS + 3)
    A("v_cmp_gt_f32 vcc, v%d, v%d", vT, vM)
    A("s_cbranch_vccnz L_newmax")
    A("L_exp:")
    for r in range(4):
        A("v_fma_f32 v%d, v%d, %s, -v%d", vS + r, vS + r, sLog2e, vMc)
    for r in range(4):
        A("v_exp_f32 v%d, v%d", vS + r, vS + r)
    A("s_nop 0")
    A("v_cvt_pk_bf16_f32 v%d, v%d, v%d", vP, vS, vS + 1)
    A("v_cvt_pk_bf16_f32 v%d, v%d, v%d", vP + 1, vS + 2, vS + 3)
    A("v_add_f32 v%d, v%d, v%d", vS, vS, vS + 1)
    A("v_add_f32 v%d, v%d, v%d", vS + 2, vS + 2, vS + 3)
    A("s_waitcnt lgkmcnt(0)")
    for t in range(8):
        A("v_mfma_f32_16x16x16_bf16 %s, %s, %s, %s", vr(vO + 4 * t, 4), vr(vV + 2 * t, 2), vr(vP, 2), vr(vO + 4 * t, 4))
        if t == 0:
            A("v_add_f32 v%d, v%d, v%d", vS, vS, vS + 2)
        if t == 1:
            A("v_add_f32 v%d, v%d, v%d", vL, vL, vS)
    A("s_cmp_lg_u32 %s, 0x14000", sIt)
    A("s_cbranch_scc1 L_nobar")
    A("s_barrier")
    A("s_cmp_eq_u32 %s, 0", sLast)
    A("s_cbranch_scc1 L_big")
    A("L_nobar:")
    A("s_cmp_eq_u32 %s, 0", sLast)
    A("s_cbranch_scc1 L_loop")
    A("s_branch L_done")

    vS2, vP4 = 144, 148
    A("L_big:")
    A("s_mov_b32 m0, %s", sM0)
    A("s_waitcnt vmcnt(0)")
    issue_pair(vVg, "s[40:43]", "s_add_u32 %s, %s, 1" % (sK, sK))
    for h in range(2):
        for m in range(4):
            A("ds_read_b128 %s, v%d offset:%d", vr(vK + 16 * h + 4 * m, 4), vKr + m, 4096 * h)
    A("s_bitcmp1_b64 s[98:99], %s", sK)
    A("s_cselect_b32 s51, %s, 48", sAlt)
    A("s_add_u32 %s, %s, s51", sId, sId)
    A("s_add_u32 s51, %s, %s", sSl, sPool)
    A("s_sub_u32 s51, s51, 25")
    A("s_cmp_eq_u32 %s, %s", sK, sNs)
    A("s_cselect_b32 %s, s51, %s", sId, sId)
    item_off()
    A("s_add_u32 %s, %s, 0x%x", sOf2, sOff, 256 << order[0])
    for h in range(2):
        for m in range(4):
            acc = (vS, vS2)[h]
            A("s_waitcnt lgkmcnt(%d)", 7 - 4 * h - m)
            A("v_mfma_f32_16x16x32_bf16 %s, %s, %s, %s", vr(acc, 4), vr(vK + 16 * h + 4 * m, 4), vr(vQ + 4 * m, 4),
              "0" if m == 0 else vr(acc, 4))
    score_scale(vS)
    if not mimic:
        A("s_nop 3")
    score_scale(vS2)
    A("v_max3_f32 v%d, v%d, v%d, v%d", vT, vS, vS + 1, vS + 2)
    A("v_max3_f32 v%d, v%d, v%d, v%d", vT + 1, vS + 3, vS2, vS2 + 1)
    A("v_max3_f32 v%d, v%d, v%d, v%d", vT, vT, vS2 + 2, vS2 + 3)
    A("v_max_f32 v%d, v%d, v%d", vT, vT, vT + 1)
    A("v_cmp_gt_f32 vcc, v%d, v%d", vT, vM)
    A("s_cbranch_vccnz L_newmax2")
    A("L_exp2:")
    for v in (vS, vS2):
        for r in range(4):
            A("v_fma_f32 v%d, v%d, %s, -v%d", v + r, v + r, sLog2e, vMc)
    for v in (vS, vS2):
        for r in range(4):
            A("v_exp_f32 v%d, v%d", v + r, v + r)
    A("s_xor_b32 m0, %s, 0x2000", sM0)
    for h in range(2):
        v = (vS, vS2)[h]
        A("v_cvt_pk_bf16_f32 v%d, v%d, v%d", vP4 + 2 * h, v, v + 1)
        A("v_cvt_pk_bf16_f32 v%d, v%d, v%d", vP4 + 2 * h + 1, v + 2, v + 3)
    A("v_pk_add_f32 %s, %s, %s", vr(vS, 2), vr(vS, 2), vr(vS + 2, 2))
    A("v_pk_add_f32 %s, %s, %s", vr(vS2, 2), vr(vS2, 2), vr(vS2 + 2, 2))
    A("v_pk_add_f32 %s, %s, %s", vr(vS, 2), vr(vS, 2), vr(vS2, 2))
    A("s_cmp_eq_u32 %s, %s", sK, sNs)
    A("v_add_f32 v%d, v%d, v%d", vS, vS, vS + 1)
    A("v_add_f32 v%d, v%d, v%d", vL, vL, vS)
    A("s_cbranch_scc1 L_bigend")
    A("s_waitcnt vmcnt(0)")
    issue_pair(vKg, "s[36:39]", "s_nop 0")
    A("L_pv:")
    for t in range(8):
        for h in range(2):
            A("ds_read_b64_tr_b16 %s, v%d offset:%d", vr(vK + 4 * t + 2 * h, 2), vVr + t, 4096 * (h + 1))
    A("s_cmp_lg_u32 %s, %s", sK, sNs)
    for t in range(8):
        A("s_waitcnt lgkmcnt(%d)", 14 - 2 * t)
        A("v_mfma_f32_16x16x32_bf16 %s, %s, %s, %s", vr(vO + 4 * t, 4), vr(vK + 4 * t, 4), vr(vP4, 4), vr(vO + 4 * t, 4))
    A("s_cbranch_scc1 L_big")
    A("s_branch L_loop")

    def claim():
        A("s_waitcnt vmcnt(0)")
        A("global_atomic_add v%d, v%d, v%d, s[26:27] %s", vCl, vCa, vOne, aflag)
        A("s_mov_b64 exec, -1")

    A("L_bigend:")
    A("s_xor_b32 %s, %s, 0x2000", sM0, sM0)
    A("s_mov_b64 exec, 1")
    claim()
    issue_item("s_xor_b32 %s, %s, 0x2000" % (sM0, sM0))
    stamp(1)
    A("s_branch L_pv")

    A("L_dyn:")
    A("s_mov_b64 exec, 1")
    A("s_waitcnt vmcnt(%d)", 8 if early else 0)
    A("v_readfirstlane_b32 %s, v%d", sId, vCl)
    A("s_add_u32 %s, %s, %s", sId, sId, sPool)
    A("s_cmp_ge_u32 %s, 2048", sId)
    A("s_cbranch_scc1 L_last")
    item_off()
    claim()
    issue_item("s_xor_b32 %s, %s, 0x2000" % (sM0, sM0))
    A("s_branch L_compute")

    def wo_load(sel, skip):
        A("s_cmp_ge_u32 %s, 9", sel)
        A("s_cbranch_scc1 %s", skip)
        A("s_lshl2_add_u32 s51, %s, s3", sHA)
        A("s_mul_i32 s51, s51, %d", 64 * 1152)
        A("s_lshl_b32 s52, %s, 7", sR)
        A("s_add_u32 s51, s51, s52")
        A("s_add_u32 s36, s12, s51")
        A("s_addc_u32 s37, s13, 0")
        A("s_sub_u32 s38, %d, s52", 64 * 1152)
        A("s_lshl_b32 s51, s3, 13")
        A("s_add_u32 s51, s51, 0x%x", L_AUX)
        dma_rows("s[36:39]", vWo, 1152, 8, 0, ffnflag, "s51")

    A("L_last:")
    A("s_mov_b64 exec, -1")
    A("s_mov_b32 %s, 1", sLast)
    if wodef:
        A("; no further item: the free load slot fetches this wave's 64 rows of the wo slice")
        wo_load(sRw, "L_nowo")
        A("s_waitcnt vmcnt(8)")
        A("s_branch L_compute")
        A("L_nowo:")
    A("s_waitcnt vmcnt(0)")
    A("s_branch L_compute")

    for sfx in ("", "2"):
        A("L_newmax%s:", sfx)
        A("v_mov_b32 v%d, v%d", vT + 1, vT)
        A("s_nop 1")
        A("v_permlane32_swap_b32 v%d, v%d", vT, vT + 1)
        A("v_max_f32 v%d, v%d, v%d", vT, vT, vT + 1)
        A("v_mov_b32 v%d, v%d", vT + 1, vT)
        A("s_nop 1")
        A("v_permlane16_swap_b32 v%d, v%d", vT, vT + 1)
        A("v_max3_f32 v%d, v%d, v%d, v%d", vM, vM, vT, vT + 1)
        A("v_mul_f32 v%d, %s, v%d", vT, sLog2e, vM)
        A("v_sub_f32 v%d, v%d, v%d", vT + 2, vMc, vT)
        A("v_exp_f32 v%d, v%d", vT + 2, vT + 2)
        A("v_mov_b32 v%d, v%d", vMc, vT)
        A("v_mul_f32 v%d, v%d, v%d", vL, vL, vT + 2)
        for i in range(0, 32, 2):
            A("v_pk_mul_f32 %s, %s, %s op_sel_hi:[1,0]", vr(vO + i, 2), vr(vO + i, 2), vr(vT + 2, 2))
        A("s_branch L_exp%s", sfx)

    A("L_done:")
    stamp(3)
    stamp(4)
    A("v_mov_b32 v%d, v%d", vT, vL)
    A("v_and_b32 v%d, 1, v0", vT + 2)
    A("v_lshlrev_b32 v%d, 9, v%d", vT + 3, vT + 2)
    A("v_permlane32_swap_b32 v%d, v%d", vL, vT)
    A("v_add_f32 v%d, v%d, v%d", vL, vL, vT)
    A("v_mov_b32 v%d, v%d", vT, vL)
    A("s_lshl_b32 s51, s3, 14")
    A("v_lshl_or_b32 v%d, v1, 4, v%d", vT + 3, vT + 3)
    A("v_permlane16_swap_b32 v%d, v%d", vL, vT)
    A("v_add_f32 v%d, v%d, v%d", vL, vL, vT)
    A("v_add_u32 v%d, s51, v%d", vT + 3, vT + 3)
    A("v_lshl_add_u32 v%d, v%d, 3, s51", vT + 2, vT + 2)
    A("s_mov_b32 exec_lo, 0x00030003")
    A("s_mov_b32 exec_hi, 0x00030003")
    for t in range(8):
        A("ds_write_b128 v%d, %s offset:%d", vT + 3, vr(vO + 4 * t, 4), 64 * t)
    A("ds_write_b32 v%d, v%d offset:1024", vT + 2, vMc)
    A("ds_write_b32 v%d, v%d offset:1028", vT + 2, vL)
    A("s_mov_b64 exec, -1")
    if w3 and wodef:
        wo_load(sRd, "L_wo_skip")
        A("s_lshl_b32 s51, s3, 14")
        A("L_wo_skip:")
    A("s_add_u32 m0, s51, 0x2000")
    A("s_cmp_ge_u32 %s, 9", sR)
    A("s_waitcnt lgkmcnt(0)")
    A("s_barrier")
    A("s_cbranch_scc1 L_main_end")

    vW, vB, vSt, vA0, vA1 = 40, 24, 72, 84, 88

    def po_poll():
        for m in range(4):
            if podma:
                A("buffer_load_dwordx4 v%d, s[72:75], 0 offen offset:%d sc1 lds", vKd + m, 1024 * m)
            else:
                A("global_load_dwordx4 %s, v%d, s[26:27] offset:%d sc1", vr(vB + 4 * m, 4), vPo, 64 * m)
        A("global_load_dwordx2 %s, v%d, s[26:27] sc1", vr(vSt, 2), vPa)

    po_poll()
    if podma:
        for m in range(4):
            A("v_or_b32 v%d, 0x2000, v%d", vKr + m, vKr + m)
    A("s_mov_b32 s60, %d", SPIN)
    if wodef:
        A("s_waitcnt vmcnt(5)")
        A("s_barrier")
    for c in range(2):
        for m in range(4):
            for e in range(2):
                A("ds_read_b64_tr_b16 %s, v%d offset:%d", vr(vW + 16 * c + 4 * m + 2 * e, 2), vWa + 2 * c + e, 4096 * m)
    A("s_waitcnt lgkmcnt(0)")
    if dry:
        A("; first pass runs with the store masked off while the first fetch is in flight")
        A("s_mov_b32 s58, 0")
        A("s_branch L_po_ok")
        A("L_po_real:")
    A("s_mov_b32 s58, 0x000f000f")
    if depth == 2:
        po_poll()
    A("L_po_poll:")
    A("s_waitcnt vmcnt(%d)", 5 * (depth - 1))
    if podma:
        for m in range(4):
            A("ds_read_b128 %s, v%d", vr(vB + 4 * m, 4), vKr + m)
        A("v_max_u32 v%d, v%d, v%d", vT, vSt, vSt + 1)
        for m in range(4):
            A("s_waitcnt lgkmcnt(%d)", 3 - m)
            A("v_max3_u32 v%d, v%d, v%d, v%d", vT, vT, vB + 4 * m, vB + 4 * m + 1)
            A("v_max3_u32 v%d, v%d, v%d, v%d", vT, vT, vB + 4 * m + 2, vB + 4 * m + 3)
    else:
        A("v_max3_u32 v%d, v%d, v%d, v%d", vT, vB, vB + 1, vB + 2)
        A("v_max3_u32 v%d, v%d, v%d, v%d", vT + 1, vB + 3, vB + 4, vB + 5)
        for i in range(6, 14, 4):
            A("v_max3_u32 v%d, v%d, v%d, v%d", vT, vT, vB + i, vB + i + 1)
            A("v_max3_u32 v%d, v%d, v%d, v%d", vT + 1, vT + 1, vB + i + 2, vB + i + 3)
        A("v_max3_u32 v%d, v%d, v%d, v%d", vT, vT, vB + 14, vB + 15)
        A("v_max3_u32 v%d, v%d, v%d, v%d", vT + 1, vT + 1, vSt, vSt + 1)
        A("v_max_u32 v%d, v%d, v%d", vT, vT, vT + 1)
    A("v_cmp_eq_u32 vcc, -1, v%d", vT)
    A("s_cbranch_vccz L_po_ok")
    if not podma:
        A("s_mov_b64 exec, vcc")
    po_poll()
    if not podma:
        A("s_mov_b64 exec, -1")
    A("s_sub_u32 s60, s60, 1")
    A("s_cmp_lg_u32 s60, 0")
    A("s_cbranch_scc1 L_po_poll")
    A("L_po_ok:")
    stamp(4)
    for m in range(4):
        for c in range(2):
            acc = (vA0, vA1)[c]
            A("v_mfma_f32_16x16x32_bf16 %s, %s, %s, %s", vr(acc, 4), vr(vW + 16 * c + 4 * m, 4), vr(vB + 4 * m, 4),
              "0" if m == 0 else vr(acc, 4))
    A("; softmax merge weights over the 8 split partials of each batch (lane bits 1..3)")
    dp = "row_mask:0xf bank_mask:0xf"
    A("v_max_f32_dpp v%d, v%d, v%d row_ror:8 %s", vT, vSt, vSt, dp)
    A("s_nop 1")
    A("v_max_f32_dpp v%d, v%d, v%d row_ror:4 %s", vT, vT, vT, dp)
    A("s_nop 1")
    A("v_max_f32_dpp v%d, v%d, v%d row_ror:2 %s", vT, vT, vT, dp)
    A("v_sub_f32 v%d, v%d, v%d", vT, vSt, vT)
    A("v_exp_f32 v%d, v%d", vT, vT)
    A("s_nop 0")
    A("v_mul_f32 v%d, v%d, v%d", vT + 1, vT, vSt + 1)
    A("s_nop 1")
    A("v_add_f32_dpp v%d, v%d, v%d row_ror:8 %s", vT + 1, vT + 1, vT + 1, dp)
    A("s_nop 1")
    A("v_add_f32_dpp v%d, v%d, v%d row_ror:4 %s", vT + 1, vT + 1, vT + 1, dp)
    A("s_nop 1")
    A("v_add_f32_dpp v%d, v%d, v%d row_ror:2 %s", vT + 1, vT + 1, vT + 1, dp)
    A("v_rcp_f32 v%d, v%d", vT + 1, vT + 1)
    A("s_nop 0")
    A("v_mul_f32 v%d, v%d, v%d", vT, vT, vT + 1)
    vKeep, vGive = 92, 96
    for r in range(4):
        A("v_cndmask_b32 v%d, v%d, v%d, s[62:63]", vKeep + r, vA0 + r, vA1 + r)
        A("v_cndmask_b32 v%d, v%d, v%d, s[62:63]", vGive + r, vA1 + r, vA0 + r)
    for r in range(4):
        A("v_mul_f32 v%d, v%d, v%d", vGive + r, vT, vGive + r)
    for r in range(4):
        A("v_mul_f32 v%d, v%d, v%d", vKeep + r, vT, vKeep + r)
    for r in range(4):
        A("v_add_f32_dpp v%d, v%d, v%d quad_perm:[2,3,0,1] %s", vKeep + r, vGive + r, vKeep + r, dp)
    for r in range(4):
        A("v_add_f32_dpp v%d, v%d, v%d row_ror:4 %s", vKeep + r, vKeep + r, vKeep + r, dp)
    for r in range(4):
        A("v_add_f32_dpp v%d, v%d, v%d row_ror:8 %s", vKeep + r, vKeep + r, vKeep + r, dp)
    put_tags(vKeep, vMk)
    if dry:
        A("s_cmp_eq_u32 s58, 0")
        A("s_cbranch_scc1 L_po_real")
    A("s_mov_b32 exec_lo, s58")
    A("s_mov_b32 exec_hi, s58")
    A("global_store_dwordx4 v%d, %s, s[26:27] sc1", vSa, vr(vKeep, 4))
    if stamps:
        A("s_mov_b64 exec, -1")
    A("L_main_end:")
    if stamps:
        A("s_cmp_lg_u32 s3, 0")
        A("s_cbranch_scc1 L_end")
        dump_stamps(1, 5, 100)
    A("s_endpgm")

    A("L_aux:")
    aX = 8
    aF = 20
    aSw, aXo, aWq, aQa, aPo, aNeg = 3, 4, 5, 6, 7, 40
    aTr = 44
    aT = 48
    aB = 56
    aA = 76
    aAc = 108
    aAu = 124
    aFl, aD = 140, 144
    sCb, sRb = "s34", "s35"
    A("v_lshrrev_b32 v%d, 3, v0", aT)
    A("v_and_b32 v%d, 6, v%d", aT + 1, aT)
    A("v_and_b32 v%d, 7, v0", aSw)
    A("v_xor_b32 v%d, v%d, v%d", aSw, aSw, aT + 1)
    A("v_lshlrev_b32 v%d, 4, v%d", aSw, aSw)
    A("v_lshl_or_b32 v%d, v%d, 13, v%d", aWq, aT, aSw)
    A("v_lshrrev_b32 v%d, 5, v0", aT + 1)
    A("v_and_b32 v%d, 31, v0", aXo)
    A("v_lshlrev_b32 v%d, 2, v%d", aXo, aXo)
    A("s_movk_i32 s62, 1152")
    A("v_mad_u32_u24 v%d, v%d, s62, v%d", aXo, aT + 1, aXo)
    A("v_mov_b64 v[%d:%d], -1", aNeg, aNeg + 1)
    A("v_mov_b64 v[%d:%d], -1", aNeg + 2, aNeg + 3)
    A("s_lshl1_add_u32 s52, %s, %s", sX, sB)
    A("s_lshl_b32 s51, %s, 5", sH)
    A("s_add_u32 s52, s52, s51")
    A("s_lshl_b32 s51, s52, 8")
    A("s_add_u32 s51, s51, 0x%x", WS_PO)
    A("v_and_b32 v%d, 1, v1", aT)
    A("v_lshlrev_b32 v%d, 12, v%d", aT + 1, aT)
    A("v_lshl_or_b32 v%d, v2, 4, v%d", aT + 1, aT + 1)
    A("v_add_u32 v%d, s51, v%d", aPo, aT + 1)
    if psl:
        A("s_lshl1_add_u32 s52, %s, %s", sX, sB)
        A("s_lshl4_add_u32 s52, %s, s52", sH)
        A("s_lshl_b32 s51, s52, 7")
        A("s_add_u32 s51, s51, 0x%x", WS_PS)
    else:
        A("s_lshl4_add_u32 s51, s52, 0x%x", WS_PS)
    A("s_mov_b32 exec_lo, 0")
    A("v_lshl_add_u32 v%d, v%d, %d, s51", aPo, aT, 4 if psl else 8)
    A("s_mov_b32 exec_lo, -1")
    A("s_mul_i32 s51, %s, %d", sG, cs)
    A("s_add_u32 s51, s51, 0x%x", WS_CT)
    A("v_writelane_b32 v%d, s51, 33", aPo)
    A("s_cmp_eq_u32 %s, 0", sX)
    A("s_cselect_b32 s63, 2, 0")
    A("s_or_b32 s63, s63, 0x00010001")
    A("s_and_b32 %s, %s, 3", sCb, sU)
    A("s_lshr_b32 %s, %s, 2", sRb, sU)
    A("s_mul_i32 s51, %s, %d", sRb, 144 * 8192)
    A("s_lshl2_add_u32 s52, %s, %s", sH, sCb)
    A("s_lshl_b32 s52, s52, 7")
    A("s_add_u32 s51, s51, s52")
    A("s_sub_u32 s38, %d, s52", 144 * 8192)
    A("s_mov_b32 s39, 0x20000")
    A("s_mov_b32 m0, 0x%x", L_STG)
    A("s_waitcnt lgkmcnt(0)")
    stamp(9)

    def clear():
        A("; reset the mailbox and the counter to all ones")
        A("s_mov_b32 exec_hi, s63")
        A("global_store_dwordx4 v%d, %s, s[26:27] %s", aPo, vr(aNeg, 4), clf)
        A("s_mov_b32 exec_hi, -1")

    if clr == 0:
        clear()
    for i in range(9):
        A("global_load_dword v%d, v%d, s[4:5] offset:%d", aX + i, aXo, 128 * i)
    A("s_add_u32 s36, s10, s51")
    A("s_addc_u32 s37, s11, 0")
    A("s_load_dword %s, s[26:27], 0x%x", sE, WS_EP)

    dma_rows("s[36:39]", aWq, 8192, 18, 0, wqflag, None)
    if clr == 1:
        clear()
    if b0:
        A("s_barrier")
    stamp(10)

    A("s_lshl2_add_u32 s51, %s, %s", sH, sRb)
    A("s_lshl3_add_u32 s51, s51, %s", sCb)
    A("s_lshl_b32 s51, s51, 8")
    A("v_bfe_u32 v%d, v0, 2, 1", aT)
    A("v_lshlrev_b32 v%d, 10, v%d", aT, aT)
    A("v_lshl_or_b32 v%d, v1, 6, v%d", aT, aT)
    A("v_and_b32 v%d, 3, v0", aT + 1)
    A("v_lshl_or_b32 v%d, v%d, 4, v%d", aT, aT + 1, aT)
    A("v_add_u32 v%d, s51, v%d", aQa, aT)

    A("s_mov_b32 %s, 0xffff0000", sHi)
    A("v_lshrrev_b32 v%d, 2, v0", aT)
    A("v_bfe_u32 v%d, v0, 3, 2", aT + 1)
    A("v_lshlrev_b32 v%d, 5, v%d", aT + 1, aT + 1)
    A("v_lshl_or_b32 v%d, v%d, 7, v%d", aT + 1, aT, aT + 1)
    A("v_and_b32 v%d, 3, v0", aT)
    A("v_lshl_or_b32 v%d, v%d, 3, v%d", aT + 1, aT, aT + 1)
    A("v_add_u32 v%d, 0x%x, v%d", aTr, L_STG, aT + 1)
    for c in range(1, 4):
        A("v_xor_b32 v%d, %d, v%d", aTr + c, 32 * c, aTr)
    A("v_mov_b32 v%d, 0xffffff00", aFl)
    A("s_waitcnt lgkmcnt(0)")
    make_tags()
    A("s_waitcnt vmcnt(18)")
    stamp(11)
    for i in range(9):
        A("v_lshlrev_b32 v%d, 16, v%d", aF + 2 * i, aX + i)
        A("v_and_b32 v%d, %s, v%d", aF + 2 * i + 1, sHi, aX + i)

    def tree(op, src, n, dst):
        A("v_pk_add_f32 %s, %s, %s", vr(dst, 2), vr(src, 2), vr(src + 2, 2))
        for i in range(4, n, 2):
            A("v_pk_add_f32 %s, %s, %s", vr(dst, 2), vr(dst, 2), vr(src + i, 2))
        A("v_add_f32 v%d, v%d, v%d", dst, dst, dst + 1)

    def red32(v):
        for k in (8, 4, 2, 1):
            A("s_nop 1")
            A("v_add_f32_dpp v%d, v%d, v%d row_ror:%d %s", v, v, v, k, dp)
        A("v_mov_b32 v%d, v%d", v + 1, v)
        A("s_nop 1")
        A("v_permlane16_swap_b32 v%d, v%d", v, v + 1)
        A("v_add_f32 v%d, v%d, v%d", v, v, v + 1)

    A("s_mov_b32 s51, 0x3ae38e39")
    tree("add", aF, 18, aT)
    red32(aT)
    A("v_mul_f32 v%d, s51, v%d", aT + 2, aT)
    for i in range(0, 18, 2):
        A("v_pk_add_f32 %s, %s, %s op_sel_hi:[1,0] neg_lo:[0,1] neg_hi:[0,1]", vr(aB + i, 2), vr(aF + i, 2), vr(aT + 2, 2))
    A("v_pk_mul_f32 %s, %s, %s", vr(aT, 2), vr(aB, 2), vr(aB, 2))
    for i in range(2, 18, 2):
        A("v_pk_fma_f32 %s, %s, %s, %s", vr(aT, 2), vr(aB + i, 2), vr(aB + i, 2), vr(aT, 2))
    A("v_add_f32 v%d, v%d, v%d", aT, aT, aT + 1)
    red32(aT)
    A("v_mul_f32 v%d, s51, v%d", aT, aT)
    A("v_cvt_pk_bf16_f32 v%d, v%d, v%d", aT, aT, aT + 2)
    A("v_and_b32 v%d, %s, v%d", aT + 2, sHi, aT)
    A("v_lshlrev_b32 v%d, 16, v%d", aT, aT)
    A("v_add_f32 v%d, 0x3727c5ac, v%d", aT, aT)
    A("v_cvt_pk_bf16_f32 v%d, v%d, v%d", aT, aT, aT)
    A("v_lshlrev_b32 v%d, 16, v%d", aT, aT)
    A("v_sqrt_f32 v%d, v%d", aT, aT)
    for i in range(0, 18, 2):
        A("v_pk_add_f32 %s, %s, %s op_sel_hi:[1,0] neg_lo:[0,1] neg_hi:[0,1]", vr(aF + i, 2), vr(aF + i, 2), vr(aT + 2, 2))
    A("v_cvt_pk_bf16_f32 v%d, v%d, v%d", aT, aT, aT)
    A("v_lshlrev_b32 v%d, 16, v%d", aT, aT)
    A("v_rcp_f32 v%d, v%d", aT + 4, aT)
    for i in range(9):
        A("v_cvt_pk_bf16_f32 v%d, v%d, v%d", aX + i, aF + 2 * i, aF + 2 * i + 1)
    for i in range(9):
        A("v_lshlrev_b32 v%d, 16, v%d", aF + 2 * i, aX + i)
        A("v_and_b32 v%d, %s, v%d", aF + 2 * i + 1, sHi, aX + i)
    for i in range(0, 18, 2):
        A("v_pk_mul_f32 %s, %s, %s op_sel_hi:[1,0]", vr(aB + i, 2), vr(aF + i, 2), vr(aT + 4, 2))
    for i in range(0, 18, 2):
        A("v_pk_fma_f32 %s, %s, %s, %s op_sel_hi:[1,0,1] neg_lo:[1,0,0] neg_hi:[1,0,0]", vr(aF + i, 2), vr(aB + i, 2), vr(aT, 2), vr(aF + i, 2))
    for i in range(0, 18, 2):
        A("v_pk_fma_f32 %s, %s, %s, %s op_sel_hi:[1,0,1]", vr(aB + i, 2), vr(aF + i, 2), vr(aT + 4, 2), vr(aB + i, 2))
    A("v_add_u32 v%d, 0x%x, v%d", aT, L_XN, aXo)
    for i in range(9):
        A("v_cvt_pk_bf16_f32 v%d, v%d, v%d", aX + i, aB + 2 * i, aB + 2 * i + 1)
        A("ds_write_b32 v%d, v%d offset:%d", aT, aX + i, 128 * i)
    A("s_mul_i32 s51, %s, 288", sRb)
    A("s_add_u32 s51, s51, 0x%x", L_XN)
    A("v_bfe_u32 v%d, v0, 2, 1", aT)
    A("v_mul_u32_u24 v%d, 1152, v%d", aT, aT)
    A("v_lshl_add_u32 v%d, v1, 3, v%d", aT, aT)
    A("v_add_u32 v%d, s51, v%d", aT, aT)
    for st in range(9):
        A("ds_read_b64 %s, v%d offset:%d", vr(aB + 2 * st, 2), aT, 32 * st)
    stamp(12)
    A("s_waitcnt vmcnt(%d) lgkmcnt(0)", clr)
    stamp(5)

    def trread(dst, c, off):
        A("ds_read_b64_tr_b16 %s, v%d offset:%d", vr(dst, 2), aTr + c, off)

    for kk in range(2):
        for c in range(4):
            trread(aA + 16 * kk + 4 * c, c, 4096 * kk)
            trread(aA + 16 * kk + 4 * c + 2, c, 4096 * kk + 2048)
    for kk in range(4):
        h = kk & 1
        A("s_waitcnt lgkmcnt(%d)", 8 if kk < 3 else 4)
        for c in range(4):
            A("v_mfma_f32_16x16x32_bf16 %s, %s, %s, %s", vr(aAc + 4 * c, 4), vr(aA + 16 * h + 4 * c, 4), vr(aB + 4 * kk, 4),
              "0" if kk == 0 else vr(aAc + 4 * c, 4))
        if kk < 2:
            for c in range(4):
                trread(aA + 16 * h + 4 * c, c, 4096 * (kk + 2))
                trread(aA + 16 * h + 4 * c + 2, c, 4096 * (kk + 2) + 2048)
        if kk == 2:
            for c in range(4):
                trread(aA + 4 * c, c, 16384)
    A("s_waitcnt lgkmcnt(0)")
    for c in range(4):
        A("v_mfma_f32_16x16x16_bf16 %s, %s, %s, %s", vr(aAc + 4 * c, 4), vr(aA + 4 * c, 2), vr(aB + 16, 2), vr(aAc + 4 * c, 4))
    A("s_mov_b32 s64, 0x22222222")
    A("s_mov_b32 s65, 0x22222222")
    A("s_mov_b32 s66, 0x44444444")
    A("s_mov_b32 s67, 0x44444444")
    A("s_mov_b32 s68, 0x88888888")
    A("s_mov_b32 s69, 0x88888888")
    A("s_mov_b32 s60, %d", SPIN)
    A("s_lshl3_add_u32 s51, %s, %s", sH, sB)
    A("s_lshl_b32 s51, s51, 10")
    A("v_lshl_add_u32 v%d, v0, 4, s51", aT + 4)
    A("v_add_u32 v%d, 0x1000, v%d", aT + 5, aT + 4)
    for c in range(1, 4):
        for r in range(4):
            A("v_cndmask_b32 v%d, v%d, v%d, s[%d:%d]", aAc + r, aAc + r, aAc + 4 * c + r, 62 + 2 * c, 63 + 2 * c)
    put_tags(aAc, aFl)
    A("s_waitcnt vmcnt(0)")
    A("s_mov_b32 exec_lo, 0x00ff00ff")
    A("s_mov_b32 exec_hi, 0x00ff00ff")
    A("global_store_dwordx4 v%d, %s, s[26:27] %s", aQa, vr(aAc, 4), qpf)
    A("s_mov_b64 exec, -1")
    stamp(6)
    A("s_mov_b32 s60, %d", SPIN)
    A("L_q_poll:")
    for i in range(4):
        A("global_load_dwordx4 %s, v%d, s[26:27] offset:%d sc1", vr(aD + 4 * i, 4), aT + 4 + (i >> 1), 2048 * (i & 1))
    A("s_sub_u32 s60, s60, 1")
    A("s_cmp_eq_u32 s60, 0")
    A("s_waitcnt vmcnt(0)")
    A("s_cbranch_scc1 L_q_ok")
    check_tags(aD, 16, aT)
    A("s_cbranch_vccnz L_q_poll")
    A("L_q_ok:")
    for h in range(2):
        A("v_pk_add_f32 %s, %s, %s", vr(aD + 2 * h, 2), vr(aD + 2 * h, 2), vr(aD + 4 + 2 * h, 2))
        A("v_pk_add_f32 %s, %s, %s", vr(aD + 8 + 2 * h, 2), vr(aD + 8 + 2 * h, 2), vr(aD + 12 + 2 * h, 2))
    for h in range(2):
        A("v_pk_add_f32 %s, %s, %s", vr(aD + 2 * h, 2), vr(aD + 2 * h, 2), vr(aD + 8 + 2 * h, 2))
    A("v_and_b32 v%d, 3, v0", aT)
    A("v_lshlrev_b32 v%d, 5, v%d", aT, aT)
    A("v_lshl_or_b32 v%d, v1, 7, v%d", aT, aT)
    A("v_bfe_u32 v%d, v0, 2, 2", aT + 1)
    A("v_lshl_or_b32 v%d, v%d, 3, v%d", aT, aT + 1, aT)
    A("v_add_u32 v%d, 0x%x, v%d", aT, L_Q, aT)
    A("v_cvt_pk_bf16_f32 v%d, v%d, v%d", aD, aD, aD + 1)
    A("v_cvt_pk_bf16_f32 v%d, v%d, v%d", aD + 1, aD + 2, aD + 3)
    A("ds_write_b64 v%d, %s", aT, vr(aD, 2))
    A("s_waitcnt lgkmcnt(0)")
    A("s_barrier")

    A("v_lshrrev_b32 v%d, 3, v0", aT)
    if exp == 2:
        A("s_movk_i32 s62, 128")
    A("v_mad_u32_u24 v%d, v%d, s62, v%d", aWq, aT, aSw)
    A("s_cmp_ge_u32 %s, %d", sR, 0 if wodef else 9)
    A("s_cbranch_scc1 L_role_b")
    A("s_mul_i32 s51, %s, %d", sHA, 256 * 1152)
    A("s_lshl_b32 s52, %s, %d", sR, 15 if exp == 2 else 7)
    A("s_add_u32 s51, s51, s52")
    A("s_add_u32 s36, s12, s51")
    A("s_addc_u32 s37, s13, 0")
    A("s_sub_u32 s38, %d, s52", 256 * 1152)
    A("s_mov_b32 s44, 0")
    A("s_mov_b32 s45, 0x%x", L_AUX)
    A("s_barrier")
    A("L_wo:")
    dma_rows("s[36:39]", aWq, 1152, 8, "s44", ffnflag, "s45")
    A("s_add_u32 s44, s44, %d", 8192 if exp == 2 else 64 * 1152)
    A("s_add_u32 s45, s45, 0x2000")
    A("s_cmp_lg_u32 s45, 0x%x", L_AUX + 0x8000)
    A("s_waitcnt vmcnt(0)")
    A("s_cbranch_scc1 L_wo")
    A("s_branch L_combine")

    A("L_role_b:")
    A("s_cmp_ge_u32 %s, 72", sF)
    A("s_cbranch_scc0 L_ffn")
    A("s_barrier")
    A("s_branch L_combine")

    A("L_ffn:")
    aG = 4
    A("s_mul_i32 s52, %s, %d", sF, 73728 if exp == 2 else 128)
    A("s_add_u32 s36, s16, s52")
    A("s_addc_u32 s37, s17, 0")
    A("s_sub_u32 s38, %d, s52", 576 * 9216)
    A("s_add_u32 s40, s18, s52")
    A("s_addc_u32 s41, s19, 0")
    A("s_mov_b32 s42, s38")
    A("s_mov_b32 s43, 0x20000")
    A("s_mul_i32 s52, %s, %d", sF, 64 * 1152)
    A("s_add_u32 s72, s20, s52")
    A("s_addc_u32 s73, s21, 0")
    A("s_mov_b32 s74, %d", 64 * 1152)
    A("s_mov_b32 s75, 0x20000")
    A("v_mul_u32_u24 v%d, %d, v%d", aG, 128 if exp == 2 else 9216, aT)
    A("v_add_u32 v%d, v%d, v%d", aG, aG, aSw)
    for c in range(4):
        A("v_add_u32 v%d, %d, v%d", aTr + c, L_AUX - L_STG, aTr + c)
    A("v_and_b32 v%d, 1, v0", aT)
    A("v_mul_u32_u24 v%d, 1152, v%d", aT, aT)
    A("v_lshl_add_u32 v%d, v1, 3, v%d", aT, aT)
    A("v_add_u32 v%d, 0x%x, v%d", aT + 6, L_XN, aT)
    for i in range(0, 32, 2):
        A("v_mov_b64 v[%d:%d], 0", aAc + i, aAc + i + 1)
    A("s_mov_b32 s44, 0")
    A("s_mov_b32 s45, 0x%x", L_AUX)
    A("s_add_u32 s46, s45, 0x2000")
    A("s_mov_b32 s47, 0")
    A("s_barrier")
    A("L_gu_issue:")
    dma_rows("s[36:39]", aG, 9216, 8, "s44", ffnflag, "s45", thr)
    dma_rows("s[40:43]", aG, 9216, 8, "s44", ffnflag, "s46", thr)
    A("s_add_u32 s44, s44, %d", 8192 if exp == 2 else 64 * 9216)
    A("s_xor_b32 s45, s45, 0x4000")
    A("s_xor_b32 s46, s46, 0x4000")
    A("s_cmp_eq_u32 s47, 0")
    A("s_cbranch_scc1 L_gu_next")
    A("L_gu_compute:")
    for st in range(4):
        A("ds_read_b64 %s, v%d offset:%d", vr(aB + 2 * st, 2), aT + 6, 32 * st)
    for w in range(2):
        acc = (aAc, aAu)[w]
        for kk in range(2):
            for c in range(4):
                trread(aA + 16 * kk + 4 * c, c, 8192 * w + 4096 * kk)
                trread(aA + 16 * kk + 4 * c + 2, c, 8192 * w + 4096 * kk + 2048)
        for kk in range(2):
            A("s_waitcnt lgkmcnt(%d)", 8 - 8 * kk)
            for c in range(4):
                A("v_mfma_f32_16x16x32_bf16 %s, %s, %s, %s", vr(acc + 4 * c, 4), vr(aA + 16 * kk + 4 * c, 4), vr(aB + 4 * kk, 4), vr(acc + 4 * c, 4))
    A("v_add_u32 v%d, 128, v%d", aT + 6, aT + 6)
    for c in range(4):
        A("v_xor_b32 v%d, 0x4000, v%d", aTr + c, aTr + c)
    A("L_gu_next:")
    A("s_add_u32 s47, s47, 1")
    A("s_cmp_eq_u32 s47, 10")
    A("s_cbranch_scc1 L_gu_done")
    A("s_cmp_lt_u32 s47, 9")
    A("s_waitcnt vmcnt(0)")
    A("s_cbranch_scc1 L_gu_issue")
    A("s_mov_b32 s44, 0")
    dma_rows("s[72:75]", aWq, 1152, 8, "s44", ffnflag, "s45", thd)
    A("s_branch L_gu_compute")
    A("L_gu_done:")
    A("s_nop 3")
    for i in range(0, 16, 2):
        A("v_cvt_pk_bf16_f32 v%d, v%d, v%d", aT, aAc + i, aAc + i + 1)
        A("v_cvt_pk_bf16_f32 v%d, v%d, v%d", aT + 1, aAu + i, aAu + i + 1)
        A("v_lshlrev_b32 v%d, 16, v%d", aT + 2, aT)
        A("v_and_b32 v%d, %s, v%d", aT + 3, sHi, aT)
        A("v_lshlrev_b32 v%d, 16, v%d", aT + 4, aT + 1)
        A("v_and_b32 v%d, %s, v%d", aT + 5, sHi, aT + 1)
        A("v_max_f32 v%d, 0, v%d", aT + 2, aT + 2)
        A("v_max_f32 v%d, 0, v%d", aT + 3, aT + 3)
        A("v_pk_mul_f32 %s, %s, %s", vr(aT + 2, 2), vr(aT + 2, 2), vr(aT + 4, 2))
        A("v_cvt_pk_bf16_f32 v%d, v%d, v%d", aB + i // 2, aT + 2, aT + 3)
    A("s_mul_i32 s51, %s, 4608", sF)
    A("s_add_u32 s51, s51, 0x%x", WS_DP)
    A("v_bfe_u32 v%d, v0, 2, 1", aT)
    A("v_lshlrev_b32 v%d, 8, v%d", aT, aT)
    A("v_lshl_or_b32 v%d, v1, 6, v%d", aT, aT)
    A("v_and_b32 v%d, 3, v0", aT + 1)
    A("v_lshl_or_b32 v%d, v%d, 4, v%d", aT, aT + 1, aT)
    A("v_add_u32 v%d, s51, v%d", aT + 6, aT)
    A("s_mov_b32 s64, 0x0c0c0c0c")
    A("s_mov_b32 s65, 0x0c0c0c0c")
    A("s_mov_b32 s66, 0x30303030")
    A("s_mov_b32 s67, 0x30303030")
    A("s_mov_b32 s68, 0xc0c0c0c0")
    A("s_mov_b32 s69, 0xc0c0c0c0")
    A("s_mov_b32 s47, 0")
    A("L_dn:")
    A("s_add_u32 s47, s47, 1")
    A("s_cmp_eq_u32 s47, 9")
    A("s_waitcnt vmcnt(0)")
    A("s_cbranch_scc1 L_dn_compute")
    A("s_add_u32 s44, s44, %d", 8192 if exp == 2 else 128)
    A("s_xor_b32 s45, s45, 0x4000")
    dma_rows("s[72:75]", aWq, 1152, 8, "s44", ffnflag, "s45", thd)
    A("L_dn_compute:")
    for kk in range(2):
        for c in range(4):
            trread(aA + 16 * kk + 4 * c, c, 4096 * kk)
            trread(aA + 16 * kk + 4 * c + 2, c, 4096 * kk + 2048)
    for kk in range(2):
        A("s_waitcnt lgkmcnt(%d)", 8 - 8 * kk)
        for c in range(4):
            A("v_mfma_f32_16x16x32_bf16 %s, %s, %s, %s", vr(aAc + 4 * c, 4), vr(aA + 16 * kk + 4 * c, 4), vr(aB + 4 * kk, 4),
              "0" if kk == 0 else vr(aAc + 4 * c, 4))
    for c in range(4):
        A("v_xor_b32 v%d, 0x4000, v%d", aTr + c, aTr + c)
    A("s_nop 4")
    for r in range(4):
        A("v_cndmask_b32 v%d, v%d, v%d, s[64:65]", aAu + r, aAc + r, aAc + 4 + r)
    for c in range(2, 4):
        for r in range(4):
            A("v_cndmask_b32 v%d, v%d, v%d, s[%d:%d]", aAu + r, aAu + r, aAc + 4 * c + r, 62 + 2 * c, 63 + 2 * c)
    put_tags(aAu, aFl)
    A("s_mov_b32 exec_lo, 0x00ff00ff")
    A("s_mov_b32 exec_hi, 0x00ff00ff")
    A("global_store_dwordx4 v%d, %s, s[26:27] %s", aT + 6, vr(aAu, 4), dpf)
    A("s_mov_b64 exec, -1")
    A("v_add_u32 v%d, 512, v%d", aT + 6, aT + 6)
    A("s_cmp_lg_u32 s47, 9")
    A("s_cbranch_scc1 L_dn")

    aXv, aGv, aOa, aSa = 10, 11, 12, 13
    A("v_lshrrev_b32 v%d, 2, v0", aT)
    A("v_mul_u32_u24 v%d, 4608, v%d", aT, aT)
    A("v_and_b32 v%d, 3, v0", aT + 1)
    A("v_lshl_or_b32 v%d, v%d, 4, v%d", aT, aT + 1, aT)
    A("s_lshl_b32 s51, %s, 6", sF)
    A("s_add_u32 s52, s51, 0x%x", WS_SP)
    A("v_add_u32 v%d, s52, v%d", aSa, aT)
    A("v_add_u32 v%d, %d, v%d", aSa + 1, 16 * 4608, aSa)
    A("s_add_u32 s52, s51, 0x%x", WS_DP)
    aDa = 20
    A("v_add_u32 v%d, s52, v%d", aDa, aT)
    for i in range(1, 5):
        A("v_add_u32 v%d, %d, v%d", aDa + i, 16 * 4608, aDa + i - 1)
    A("s_lshr_b32 s51, %s, 2", sF)
    A("s_lshl_b32 s51, s51, 6")
    A("s_and_b32 s52, %s, 3", sF)
    A("s_lshl3_add_u32 s51, s52, s51")
    A("v_and_b32 v%d, 1, v0", aT)
    A("v_mul_u32_u24 v%d, 1152, v%d", aT, aT)
    A("v_bfe_u32 v%d, v0, 1, 1", aT + 1)
    A("v_lshl_add_u32 v%d, v%d, 5, v%d", aT, aT + 1, aT)
    A("v_bfe_u32 v%d, v0, 4, 1", aT + 1)
    A("v_lshl_add_u32 v%d, v%d, 2, v%d", aT, aT + 1, aT)
    A("v_lshrrev_b32 v%d, 5, v0", aT + 1)
    A("v_lshl_add_u32 v%d, v%d, 1, v%d", aT, aT + 1, aT)
    A("v_add_u32 v%d, s51, v%d", aOa, aT)
    A("global_load_ushort v%d, v%d, s[4:5]", aXv, aOa)

    def red_rows():
        A("s_nop 1")
        A("v_permlane32_swap_b32 v%d, v%d", aD, aD + 1)
        A("v_permlane32_swap_b32 v%d, v%d", aD + 2, aD + 3)
        A("v_add_f32 v%d, v%d, v%d", aD, aD, aD + 1)
        A("v_add_f32 v%d, v%d, v%d", aD + 2, aD + 2, aD + 3)
        A("s_nop 1")
        A("v_permlane16_swap_b32 v%d, v%d", aD, aD + 2)
        A("v_add_f32 v%d, v%d, v%d", aD, aD, aD + 2)
        A("s_nop 1")
        A("v_add_f32_dpp v%d, v%d, v%d row_ror:8 %s", aD, aD, aD, dp)
        A("s_nop 1")
        A("v_add_f32_dpp v%d, v%d, v%d row_ror:4 %s", aD, aD, aD, dp)
        A("v_cvt_pk_bf16_f32 v%d, v%d, v%d", aD, aD, aD)
        A("v_lshlrev_b32 v%d, 16, v%d", aD, aD)

    aCa, aXf, aRw = 26, 28, aA

    def sp_poll():
        for i in range(2):
            A("global_load_dwordx4 %s, v%d, s[26:27] sc1", vr(aRw + 4 * i, 4), aSa + i)

    A("L_combine:")
    stamp(7)
    A("v_and_b32 v%d, 1, v1", aCa)
    A("v_lshlrev_b32 v%d, 3, v%d", aCa + 1, aCa)
    A("v_lshlrev_b32 v%d, 9, v%d", aCa, aCa)
    A("v_lshl_or_b32 v%d, v2, 5, v%d", aCa, aCa)
    A("v_lshrrev_b32 v%d, 5, v0", aT)
    A("v_lshl_or_b32 v%d, v%d, 4, v%d", aCa, aT, aCa)
    if dry:
        A("; first pass runs during the stream with every global access masked off")
        A("s_mov_b32 s58, 0")
        A("s_mov_b32 s59, 1")
        A("s_branch L_cb")
        A("L_cb_real:")
        A("s_mov_b64 exec, -1")
        A("s_waitcnt vmcnt(0)")
    A("s_mov_b32 s58, -1")
    A("s_mov_b32 s59, %d", SPIN)
    A("s_barrier")
    A("L_cb:")
    for w in range(4):
        A("ds_read_b64 %s, v%d offset:%d", vr(aB + 2 * w, 2), aCa + 1, 16384 * w + 1024)
    for w in range(4):
        A("ds_read_b128 %s, v%d offset:%d", vr(aA + 4 * w, 4), aCa, 16384 * w)
    A("s_waitcnt lgkmcnt(4)")
    aR = aAc
    A("v_max3_f32 v%d, v%d, v%d, v%d", aR + 2, aB, aB + 2, aB + 4)
    A("v_max_f32 v%d, v%d, v%d", aR + 2, aR + 2, aB + 6)
    for w in range(4):
        A("v_sub_f32 v%d, v%d, v%d", aB + 2 * w, aB + 2 * w, aR + 2)
    for w in range(4):
        A("v_exp_f32 v%d, v%d", aB + 2 * w, aB + 2 * w)
    A("v_mul_f32 v%d, v%d, v%d", aR + 3, aB, aB + 1)
    for w in range(1, 4):
        A("v_fmac_f32 v%d, v%d, v%d", aR + 3, aB + 2 * w, aB + 2 * w + 1)
    A("s_waitcnt lgkmcnt(0)")
    for h in range(2):
        A("v_pk_mul_f32 %s, %s, %s op_sel_hi:[1,0]", vr(aA + 2 * h, 2), vr(aA + 2 * h, 2), vr(aB, 2))
    for w in range(1, 4):
        for h in range(2):
            A("v_pk_fma_f32 %s, %s, %s, %s op_sel_hi:[1,0,1]", vr(aA + 2 * h, 2), vr(aA + 4 * w + 2 * h, 2), vr(aB + 2 * w, 2), vr(aA + 2 * h, 2))
    A("v_cvt_pk_bf16_f32 v%d, v%d, v%d", aR, aA, aA + 1)
    A("v_cvt_pk_bf16_f32 v%d, v%d, v%d", aR + 1, aA + 2, aA + 3)
    for r in (2, 3, 0, 1):
        A("v_min_u32 v%d, -2, v%d", aR + r, aR + r)
    A("s_nop 1")
    A("v_permlane32_swap_b32 v%d, v%d", aR, aR + 2)
    A("v_permlane32_swap_b32 v%d, v%d", aR + 1, aR + 3)
    A("s_mov_b32 exec_lo, s58")
    A("s_and_b32 exec_hi, s58, 0x00010001")
    A("global_store_dwordx4 v%d, %s, s[26:27] sc1", aPo, vr(aR, 4))
    A("s_mov_b64 exec, -1")
    stamp(8)
    A("s_cmp_ge_u32 %s, 72", sF)
    A("s_cbranch_scc1 L_notred")
    A("s_mov_b32 s60, s59")
    A("L_dp_poll:")
    for r in range(4):
        A("v_mov_b32 v%d, s%d", aD + 16 + r, sTag + r)
    A("s_mov_b32 exec_lo, s58")
    A("s_mov_b32 exec_hi, s58")
    for i in range(4):
        A("global_load_dwordx4 %s, v%d, s[26:27] %s", vr(aD + 4 * i, 4), aDa + i, dlf)
    A("s_mov_b32 exec_hi, 0")
    A("global_load_dwordx4 %s, v%d, s[26:27] %s", vr(aD + 16, 4), aDa + 4, dlf)
    A("s_mov_b64 exec, -1")
    A("s_sub_u32 s60, s60, 1")
    A("s_cmp_eq_u32 s60, 0")
    A("s_waitcnt vmcnt(0)")
    check_tags(aD, 20, aT)
    A("s_cbranch_scc1 L_dp_ok")
    A("s_cbranch_vccnz L_dp_poll")
    A("L_dp_ok:")
    A("s_mov_b32 exec_lo, s58")
    A("s_mov_b32 exec_hi, s58")
    sp_poll()
    A("s_mov_b64 exec, -1")
    for i in range(1, 5):
        for h in range(2):
            A("v_pk_add_f32 %s, %s, %s", vr(aD + 2 * h, 2), vr(aD + 2 * h, 2), vr(aD + 4 * i + 2 * h, 2))
    red_rows()
    A("v_mul_f32 v%d, 0xbfb8aa3b, v%d", aT, aD)
    A("v_exp_f32 v%d, v%d", aT, aT)
    A("v_lshlrev_b32 v%d, 16, v%d", aXf, aXv)
    A("v_add_f32 v%d, 1.0, v%d", aT, aT)
    A("v_rcp_f32 v%d, v%d", aT, aT)
    A("s_mov_b32 s60, s59")
    A("v_mul_f32 v%d, v%d, v%d", aT, aT, aD)
    A("v_cvt_pk_bf16_f32 v%d, v%d, v%d", aT, aT, aT)
    A("v_lshlrev_b32 v%d, 16, v%d", aGv, aT)
    if depth == 2:
        sp_poll()
    A("L_sp_poll:")
    A("s_waitcnt vmcnt(%d)", 2 * (depth - 1))
    check_tags(aD, 8, aT, aRw)
    A("s_cbranch_vccz L_sp_ok")
    A("s_and_b32 exec_lo, vcc_lo, s58")
    A("s_and_b32 exec_hi, vcc_hi, s58")
    sp_poll()
    A("s_mov_b64 exec, -1")
    A("s_sub_u32 s60, s60, 1")
    A("s_cmp_lg_u32 s60, 0")
    A("s_cbranch_scc1 L_sp_poll")
    A("L_sp_ok:")
    for h in range(2):
        A("v_pk_add_f32 %s, %s, %s", vr(aD + 2 * h, 2), vr(aD + 2 * h, 2), vr(aD + 4 + 2 * h, 2))
    red_rows()
    A("v_mul_f32 v%d, v%d, v%d", aD, aD, aGv)
    A("v_cvt_pk_bf16_f32 v%d, v%d, v%d", aD, aD, aD)
    A("v_lshlrev_b32 v%d, 16, v%d", aD, aD)
    A("v_add_f32 v%d, v%d, v%d", aD, aD, aXf)
    A("v_cvt_pk_bf16_f32 v%d, v%d, v%d", aD, aD, aD)
    A("s_and_b32 exec_lo, s58, 0x000f000f")
    A("s_and_b32 exec_hi, s58, 0x000f000f")
    A("global_store_short v%d, v%d, s[22:23]", aOa, aD)
    if dry:
        A("s_cbranch_scc0 L_cb_real")
    A("s_cmp_lg_u32 %s, 0", sF)
    A("s_cbranch_scc1 L_aux_end")
    A("; every workgroup has read the epoch word by now: advance it")
    A("s_mov_b64 exec, 1")
    A("v_mov_b32 v%d, 0x%x", aT, WS_EP)
    A("v_mov_b32 v%d, %s", aT + 1, sE)
    A("global_store_dword v%d, v%d, s[26:27] sc1", aT, aT + 1)
    A("s_branch L_aux_end")
    A("L_notred:")
    if dry:
        A("s_cmp_eq_u32 s58, 0")
        A("s_cbranch_scc1 L_cb_real")
    if wodef:
        A("s_barrier")
    A("L_aux_end:")
    if stamps:
        A("s_waitcnt vmcnt(0)")
        stamp(13)
        A("s_mov_b64 exec, -1")
        dump_stamps(0, 1, 100)
        dump_stamps(5, 14, 100)
    A("L_end:")
    A("s_endpgm")

    A('.section .rodata,"a"\n.p2align 6\n.amdhsa_kernel %s' % KNAME)
    A("  .amdhsa_next_free_vgpr 168\n  .amdhsa_next_free_sgpr 102\n  .amdhsa_accum_offset 168")
    A("  .amdhsa_group_segment_fixed_size 0\n  .amdhsa_kernarg_size 96\n  .amdhsa_user_sgpr_count 2")
    A("  .amdhsa_user_sgpr_kernarg_segment_ptr 1\n  .amdhsa_system_sgpr_workgroup_id_x 1\n.end_amdhsa_kernel")
    return "\n".join(A.L) + "\n"


if __name__ == "__main__":
    for spec in sys.argv[1:]:
        kw = {}
        out = None
        for kv in spec.split(","):
            k, v = kv.split("=")
            if k == "o":
                out = v
                continue
            kw[k] = int(v) if v.lstrip("-").isdigit() and k not in ("bits", "ord", "skip") else v.replace("+", " ").replace("none", "")
        name = out or "k_" + spec.replace("=", "").replace(",", "_").replace("+", "") + ".s"
        open(name, "w").write(gen(**kw))
        print(name)
```
